```python
import torch

def _softmax(x, axis=-1):
    return torch.softmax(x, dim=axis)
def _gelu(x):
    return torch.nn.functional.gelu(x, approximate="tanh")
def _silu(x):
    return torch.nn.functional.silu(x)
def _sigmoid(x):
    return torch.sigmoid(x)
def _layernorm(x, axis=-1, eps=1e-5):
    m = x.mean(dim=axis, keepdim=True)
    v = x.var(dim=axis, keepdim=True, unbiased=False)
    return (x - m) / torch.sqrt(v + eps)
def _scatter_add(tgt, idx, src, axis=0):
    return tgt.clone().index_add_(axis, idx, src)
def _segment_sum(src, seg, n):
    out = torch.zeros((n,) + src.shape[1:], dtype=src.dtype)
    return out.index_add_(0, seg, src)
def _pad(x, pw):
    flat = tuple(v for pair in reversed(pw) for v in pair)
    return torch.nn.functional.pad(x, flat)

kernel_name = 'recurrent_scan__compressed_kv_cla__mixer_channel_mlp__decode'

def setup_inputs():

    _w = (lambda a: (lambda t: t.to(torch.bfloat16) if t.is_floating_point() else t)(torch.as_tensor(a)))
    def _A_setup():
        B, H, Sq, Sk, D, M = 1, 32, 1, 8192, 128, 512
        Dc = 4 * D
        return {
            "x": _w((lambda *s: torch.randn(*s, dtype=torch.bfloat16) * 0.1)(B, Sq, M)),
            "c_kv": _w((lambda *s: torch.randn(*s, dtype=torch.bfloat16) * 3.2)(B, Sk, Dc)),
            "w_q": _w((lambda *s: torch.randn(*s, dtype=torch.bfloat16) * 0.8)(M, H, D) * (M ** -0.5)),
            "w_uk": _w((lambda *s: torch.randn(*s, dtype=torch.bfloat16) * 0.8)(Dc, H, D) * (Dc ** -0.5)),
            "w_uv": _w((lambda *s: torch.randn(*s, dtype=torch.bfloat16) * 3.2)(Dc, H, D) * (Dc ** -0.5)),
            "w_o": _w((lambda *s: torch.randn(*s, dtype=torch.bfloat16) * 3.2)(H, D, M) * ((H * D) ** -0.5)),
        }
    _A_in = _A_setup()

    def _B_setup():
        B, S, D, F = 1, 1, 512, 1376
        return {
            "x": _w((lambda *s: torch.randn(*s, dtype=torch.bfloat16) * 0.1)(B, S, D)),
            "w1": _w((lambda *s: torch.randn(*s, dtype=torch.bfloat16) * 3.2)(D, F) * (D ** -0.5)),
            "b1": _w((lambda *s: torch.randn(*s, dtype=torch.bfloat16) * 3.2)(F)),
            "w2": _w((lambda *s: torch.randn(*s, dtype=torch.bfloat16) * 3.2)(F, D) * (F ** -0.5)),
            "b2": _w((lambda *s: torch.randn(*s, dtype=torch.bfloat16) * 3.2)(D)),
        }
    _B_in = _B_setup()

    return {
        "A_x": _A_in["x"],
        "A_c_kv": _A_in["c_kv"],
        "A_w_q": _A_in["w_q"],
        "A_w_uk": _A_in["w_uk"],
        "A_w_uv": _A_in["w_uv"],
        "A_w_o": _A_in["w_o"],
        "B_x": _B_in["x"],
        "B_w1": _B_in["w1"],
        "B_b1": _B_in["b1"],
        "B_w2": _B_in["w2"],
        "B_b2": _B_in["b2"],
    }

def reference(A_x, A_c_kv, A_w_q, A_w_uk, A_w_uv, A_w_o, B_x, B_w1, B_b1, B_w2, B_b2):
    def _A_ref(x, c_kv, w_q, w_uk, w_uv, w_o):
        B, Sq, M = x.shape[0], x.shape[1], x.shape[2]
        Sk = c_kv.shape[1]
        H, D = w_q.shape[1], w_q.shape[2]
        q = torch.einsum("bqm,mhd->bhqd", x, w_q)
        k = torch.einsum("bkc,chd->bhkd", c_kv, w_uk)
        v = torch.einsum("bkc,chd->bhkd", c_kv, w_uv)
        scores = torch.einsum("bhqd,bhkd->bhqk", q, k) * (D ** -0.5)
        off = Sk - Sq
        qi = torch.arange(Sq)[:, None]
        kj = torch.arange(Sk)[None, :]
        cmask = kj <= (qi + off)
        scores = torch.where(cmask[None, None], scores, -1e9)
        p = _softmax(scores, axis=-1)
        ctx = torch.einsum("bhqk,bhkd->bhqd", p, v)
        return torch.einsum("bhqd,hdm->bqm", ctx, w_o)

    def _B_ref(x, w1, b1, w2, b2):
        y = _layernorm(x, axis=-1)
        h = _gelu(torch.einsum("bsd,df->bsf", y, w1) + b1)
        return torch.einsum("bsf,fd->bsd", h, w2) + b2

    x = A_x
    xn = _layernorm(x, axis=-1)
    s = _A_ref(xn, A_c_kv, A_w_q, A_w_uk, A_w_uv, A_w_o)
    g = _silu(_B_ref(xn, B_w1, B_b1, B_w2, B_b2))
    return x + s * g
```

```python
NAME = "recurrent_scan__compressed_kv_cla__mixer_channel_mlp__decode"
KOFF = dict(x=0, ckv=8, wq=16, wuk=24, wuv=32, wo=40, bx=48, w1=56, b1=64, w2=72, b2=80, out=88, dbg=96, ws=104)
NBYTES = dict(x=1024, ckv=8 << 20, wq=4 << 20, wuk=4 << 20, wuv=4 << 20, wo=4 << 20, bx=1024, w1=512*1376*2, b1=1376*2, w2=512*1376*2, b2=1024, out=1024, dbg=256, ws=256 << 20)

class Asm:
    def __init__(self):
        self.lines = []
    def __call__(self, s=""):
        for l in s.split("\n"):
            l = l.strip()
            if not l:
                continue
            if l.endswith(":") or l.startswith("."):
                self.lines.append(l)
            else:
                self.lines.append("    " + l)
    def text(self):
        return "\n".join(self.lines) + "\n"

def wrap(body, grid, block, lds, nvgpr, accum, nsgpr=102, header=""):
    k = NAME + "_kernel"
    return f"""{header}; @launch grid=({grid},1,1) block=({block},1,1) lds={lds}
.amdgcn_target "amdgcn-amd-amdhsa--gfx950"
.text
.globl {k}
.p2align 8
.type {k},@function
{k}:
{body}.section .rodata,"a"
.p2align 6
.amdhsa_kernel {k}
  .amdhsa_next_free_vgpr {nvgpr}
  .amdhsa_next_free_sgpr {nsgpr}
  .amdhsa_accum_offset {accum}
  .amdhsa_group_segment_fixed_size 0
  .amdhsa_kernarg_size 112
  .amdhsa_user_sgpr_count 2
  .amdhsa_user_sgpr_kernarg_segment_ptr 1
  .amdhsa_system_sgpr_workgroup_id_x 1
.end_amdhsa_kernel
"""
```

```python
import sys, struct, math
from asmlib import *

def f2u(x):
    return struct.unpack("<I", struct.pack("<f", x))[0]

WS_QP = 0x010000
WS_QA = 0x020000
WS_ML = 0x030000
WS_OP = 0x040000
WS_MP = 0x080000
WS_CP = 0x200000
WS_USED = 0x400000
STAMP_OFF = 200 << 20

ROW = 1056
L_TILE = 0
L_Q = 128 * ROW
L_P = L_Q + 16 * ROW
L_M = L_P + 4096
L_Y = L_M + 256
L_H = L_Y + 2048
LDS_BYTES = L_H + 256
P_QR = 0
P_QB = 2048
P_W = 4096
P_CX = 4608
P_G = 8192

S_W, S_XCD, S_SLOT = 3, 4, 5
S_TAG32, S_TAG12, S_TAGF, S_TAG16, S_TB, S_LSB, S_M12, S_SELHI, S_SPIN = 56, 57, 58, 59, 60, 61, 62, 63, 64
S_SELLO = 65
SPIN_MAX = 1 << 20


class K(Asm):
    def __init__(self, opt):
        super().__init__()
        self.opt = opt
        self.nlab = 0
        self.stamps = opt.get("stamps", False)

    def lab(self, p="L"):
        self.nlab += 1
        return f"{p}_{self.nlab}"

    def stamp(self, i):
        if self.stamps:
            self(f"s_memrealtime s[{70+2*i}:{71+2*i}]")

    def dump_stamps(self):
        if not self.stamps:
            return
        self("s_mov_b64 exec, -1\ns_waitcnt lgkmcnt(0)\nv_mov_b32 v250, 0")
        for i in range(15):
            self(f"v_writelane_b32 v250, s{70+2*i}, {i}")
        self(f"v_writelane_b32 v250, s{S_SPIN}, 15")
        self(f"s_lshl_b32 s6, s2, 2\ns_add_u32 s6, s6, s{S_W}\ns_lshl_b32 s6, s6, 6\ns_add_u32 s6, s6, {STAMP_OFF}")
        self("v_mbcnt_lo_u32_b32 v251, -1, 0\nv_lshlrev_b32 v251, 2, v251\nv_add_u32 v251, s6, v251")
        self("s_mov_b64 exec, 0xffff\nglobal_store_dword v251, v250, s[34:35]")

    def srd(self, q, ptr, nbytes):
        self(f"s_mov_b32 s{q}, s{ptr}\ns_mov_b32 s{q+1}, s{ptr+1}\ns_mov_b32 s{q+2}, {nbytes}\ns_mov_b32 s{q+3}, 0x20000")

    def spin(self):
        self(f"s_add_u32 s{S_SPIN}, s{S_SPIN}, 1\ns_cmp_gt_u32 s{S_SPIN}, {SPIN_MAX}\ns_cbranch_scc1 L_end")

    def unpack8(self, dst, src):
        for q in range(4):
            self(f"v_lshlrev_b32 v{dst+2*q}, 16, v{src+q}\nv_and_b32 v{dst+2*q+1}, 0xffff0000, v{src+q}")

    def wave_reduce(self, op, x, t):
        for m in ("quad_perm:[1,0,3,2]", "quad_perm:[2,3,0,1]", "row_ror:4", "row_ror:8"):
            self(f"s_nop 1\n{op}_dpp v{x}, v{x}, v{x} {m} row_mask:0xf bank_mask:0xf")
        for sw in ("v_permlane16_swap_b32", "v_permlane32_swap_b32"):
            self(f"v_mov_b32 v{t}, v{x}\ns_nop 1\n{sw} v{t}, v{x}\n{op} v{x}, v{x}, v{t}")

    def ln_stats(self, f, mb, r, t0, t1):
        self(f"v_add_f32 v{mb}, v{f}, v{f+1}\nv_add_f32 v{t0}, v{f+2}, v{f+3}\nv_add_f32 v{t1}, v{f+4}, v{f+5}\nv_add_f32 v{r}, v{f+6}, v{f+7}")
        self(f"v_add_f32 v{mb}, v{mb}, v{t0}\nv_add_f32 v{t1}, v{t1}, v{r}\nv_add_f32 v{mb}, v{mb}, v{t1}")
        self.wave_reduce("v_add_f32", mb, t0)
        self(f"v_mul_f32 v{mb}, {hex(f2u(1/512))}, v{mb}")
        for i in range(8):
            self(f"v_sub_f32 v{t0}, v{f+i}, v{mb}")
            self(f"v_mul_f32 v{r}, v{t0}, v{t0}" if i == 0 else f"v_fmac_f32 v{r}, v{t0}, v{t0}")
        self.wave_reduce("v_add_f32", r, t0)
        self(f"v_mul_f32 v{r}, {hex(f2u(1/512))}, v{r}\nv_cvt_pk_bf16_f32 v{mb}, 0, v{mb}\nv_cvt_pk_bf16_f32 v{r}, 0, v{r}")
        self(f"v_add_f32 v{r}, {hex(f2u(1e-5))}, v{r}\nv_cvt_pk_bf16_f32 v{r}, 0, v{r}\nv_sqrt_f32 v{r}, v{r}\ns_nop 0")
        self(f"v_cvt_pk_bf16_f32 v{r}, 0, v{r}\nv_rcp_f32 v{r}, v{r}\ns_nop 0")

    def ln_apply(self, v, mb, r, dup):
        self(f"v_sub_f32 v{v}, v{v}, v{mb}\nv_cvt_pk_bf16_f32 v{v}, 0, v{v}\nv_mul_f32 v{v}, v{v}, v{r}")
        self(f"v_cvt_pk_bf16_f32 v{v}, v{v}, v{v}" if dup else f"v_cvt_pk_bf16_f32 v{v}, 0, v{v}")

    def delta_masks(self, m, vj, t):
        self(f"v_and_b32 v{t}, 1, v{vj}\nv_cmp_eq_u32 vcc, 1, v{t}\nv_mov_b32 v{t}, 0xffff\nv_mov_b32 v{m}, 0xffff0000\nv_cndmask_b32 v{t}, v{t}, v{m}, vcc")
        self(f"v_lshrrev_b32 v{m+3}, 1, v{vj}")
        for r in range(4):
            self(f"v_cmp_eq_u32 vcc, {r}, v{m+3}\ns_nop 1\nv_cndmask_b32 v{m+r}, 0, v{t}, vcc")

    def tags(self):
        self(f"s_add_u32 s{S_TAG32}, s{S_TAG32}, 1\ns_and_b32 s{S_TAG12}, s{S_TAG32}, 0xfff")
        self(f"s_and_b32 s{S_TAG16}, s{S_TAG32}, 0x1fff\ns_or_b32 s{S_TAG16}, s{S_TAG16}, 0x4000\ns_lshl_b32 s{S_TAGF}, s{S_TAG16}, 16")
        self(f"s_mov_b32 s{S_LSB}, 0x00010001\ns_bitcmp1_b32 s{S_TAG32}, 0\ns_cselect_b32 s{S_TB}, s{S_LSB}, 0")
        self(f"s_movk_i32 s{S_M12}, 0xfff\ns_mov_b32 s{S_SELHI}, 0x07060302\ns_mov_b32 s{S_SELLO}, 0x05040100")

    def transpose8(self, dst, src):
        for T in range(8):
            for a in range(4):
                sel = S_SELHI if T & 1 else S_SELLO
                self(f"v_perm_b32 v{dst+4*T+a}, v{src+4*(2*a+1)+(T>>1)}, v{src+4*(2*a)+(T>>1)}, s{sel}")

    def wp(self, name, nxt):
        if self.opt.get("walk", True):
            self(f"{name}:\ns_cbranch_execz {nxt}")

    def walk(self, starts, ret):
        if not self.opt.get("walk", True):
            return
        self("s_mov_b64 exec, 0")
        for w in range(3):
            self(f"s_cmp_eq_u32 s{S_W}, {w}\ns_cbranch_scc1 {starts[w]}")
        self(f"s_branch {starts[3]}\n{ret}:\ns_mov_b64 exec, -1")


def reduce_rows(k, base, n, vaddr_soff, nvalid_last, dst, lab):
    vaddr, stride = vaddr_soff
    R = base
    k(f"{lab}:")
    for i in range(n):
        va = vaddr + (1 if (nvalid_last and i == n - 1) else 0)
        k(f"s_mov_b32 s6, {i*stride}\nbuffer_load_dwordx4 v[{R+4*i}:{R+4*i+3}], v{va}, s[52:55], s6 offen sc1")
    k.spin()
    t = R + 4 * n
    k(f"v_mov_b32 v{t}, 0")
    for i in range(n):
        k(f"s_waitcnt vmcnt({n-1-i})\nv_bitop3_b32 v{t}, v{t}, v{R+4*i}, s{S_TAG12} bitop3:0xf6")
    k(f"v_and_b32 v{t}, s{S_M12}, v{t}\nv_cmp_ne_u32 vcc, 0, v{t}\ns_cbranch_vccnz {lab}")
    for i in range(n):
        k(f"v_and_b32 v{R+4*i}, 0xfffff000, v{R+4*i}")
    if nvalid_last:
        k(f"s_mov_b64 exec, {hex((1 << (4*nvalid_last)) - 1)}")
        for q in range(4):
            k(f"v_add_f32 v{R+q}, v{R+q}, v{R+4*(n-1)+q}")
        k("s_mov_b64 exec, -1")
        n -= 1
    live = list(range(n))
    while len(live) > 1:
        nxt = []
        for a in range(0, len(live) - 1, 2):
            for q in range(4):
                k(f"v_add_f32 v{R+4*live[a]+q}, v{R+4*live[a]+q}, v{R+4*live[a+1]+q}")
            nxt.append(live[a])
        if len(live) & 1:
            nxt.append(live[-1])
        live = nxt
    k(f"s_nop 1\nv_permlane32_swap_b32 v{R}, v{R+2}\nv_permlane32_swap_b32 v{R+1}, v{R+3}")
    k(f"v_add_f32 v{R}, v{R}, v{R+2}\nv_add_f32 v{R+1}, v{R+1}, v{R+3}\ns_nop 1\nv_permlane16_swap_b32 v{R}, v{R+1}")
    k(f"v_add_f32 v{dst}, v{R}, v{R+1}")
    for m in ("row_ror:4", "row_ror:8"):
        k(f"s_nop 1\nv_add_f32_dpp v{dst}, v{dst}, v{dst} {m} row_mask:0xf bank_mask:0xf")


def build(opt):
    k = K(opt)
    NT = "nt"
    k.stamp(0)
    k("s_load_dwordx16 s[8:23], s[0:1], 0\ns_load_dwordx8 s[24:31], s[0:1], 64\ns_load_dwordx4 s[32:35], s[0:1], 96")
    k("s_cmp_ge_u32 s2, 256\ns_cbranch_scc1 L_end")
    k(f"v_lshrrev_b32 v1, 6, v0\nv_and_b32 v0, 63, v0\nv_readfirstlane_b32 s{S_W}, v1")
    k(f"s_and_b32 s{S_XCD}, s2, 7\ns_lshr_b32 s{S_SLOT}, s2, 3\ns_mov_b32 s{S_SPIN}, 0")
    k("v_lshrrev_b32 v2, 4, v0\nv_and_b32 v3, 15, v0\nv_lshlrev_b32 v4, 4, v0")
    k(f"s_and_b32 s66, s{S_SLOT}, 3\ns_lshl_b32 s6, s{S_XCD}, 2\ns_add_u32 s66, s66, s6")
    k(f"s_bfe_u32 s67, s{S_SLOT}, 0x20002")
    k(f"s_lshl_b32 s6, s67, 2\ns_add_u32 s6, s6, s{S_W}\ns_lshl_b32 s68, s6, 5")
    k("s_lshl_b32 s6, s68, 13\ns_lshl_b32 s7, s66, 8\ns_add_u32 s69, s6, s7")
    k("v_lshlrev_b32 v5, 16, v2\nv_lshl_add_u32 v5, v3, 4, v5\nv_add_u32 v5, s69, v5")
    k("s_movk_i32 s7, 0x2000")
    k(f"s_cmp_lt_u32 s{S_SLOT}, 16\ns_cbranch_scc1 A_entry")

    k("v_bfe_u32 v6, v0, 2, 2\nv_lshlrev_b32 v6, 15, v6\nv_lshl_add_u32 v6, v2, 6, v6\nv_and_b32 v7, 3, v0\nv_lshl_add_u32 v6, v7, 4, v6\nv_add_u32 v6, s69, v6")
    k("s_lshl_b32 s6, s68, 1\nv_lshl_add_u32 v8, v2, 4, s6")
    k("s_waitcnt lgkmcnt(0)")
    k.stamp(1)
    k(f"s_load_dword s{S_TAG32}, s[34:35], 0")
    k("global_load_dwordx4 v[16:19], v4, s[8:9]\nglobal_load_dwordx4 v[20:23], v8, s[8:9]")
    k.srd(36, 12, NBYTES["wq"])
    k("s_mov_b32 s6, 0")
    for s in range(8):
        k(f"buffer_load_dwordx4 v[{32+4*s}:{35+4*s}], v5, s[36:39], s6 offen {NT}")
        if s < 7:
            k("s_add_u32 s6, s6, s7")
    k.srd(40, 14, NBYTES["wuk"])
    nfirst = opt.get("p_first", 3)
    def wuk_load(n):
        v, T = n >> 2, n & 3
        k(f"s_mov_b32 s6, {(16*v+T)*8192}\nbuffer_load_dwordx4 v[{64+4*n}:{67+4*n}], v6, s[40:43], s6 offen {NT}")
    for n in range(nfirst):
        wuk_load(n)
    k("s_branch P_main")

    k("A_entry:")
    k(f"s_lshr_b32 s6, s{S_SLOT}, 1\ns_lshl_b32 s66, s{S_XCD}, 3\ns_add_u32 s66, s66, s6")
    k(f"s_and_b32 s67, s{S_SLOT}, 1")
    k(f"s_lshl_b32 s6, s66, 2\ns_add_u32 s6, s6, s{S_W}\ns_lshl_b32 s68, s6, 15\ns_lshl_b32 s6, s67, 14\ns_add_u32 s68, s68, s6")
    k(f"s_mul_i32 s69, s{S_W}, {32*ROW}")
    k("s_waitcnt lgkmcnt(0)")
    k.stamp(1)
    k(f"s_load_dword s{S_TAG32}, s[34:35], 0")
    k.srd(36, 10, NBYTES["ckv"])
    ndummy = opt.get("a_dummy", 4)
    if ndummy:
        k.srd(40, 12, NBYTES["wq"])
        k(f"s_mov_b32 s6, {(8-ndummy)*8192}")
        for s in range(ndummy):
            k(f"buffer_load_dwordx4 v[{32+4*s}:{35+4*s}], v5, s[40:43], s6 offen {NT}")
            if s < ndummy - 1:
                k("s_add_u32 s6, s6, s7")
    k(f"s_mov_b32 m0, s69\ns_movk_i32 s20, {ROW}\ns_movk_i32 s21, 0x400")
    def row_loop(n):
        l = k.lab("A_rows")
        k(f"s_mov_b32 s6, {n}\n{l}:")
        k(f"buffer_load_dwordx4 v4, s[36:39], s68 offen {NT} lds")
        k(f"s_add_u32 m0, m0, s20\ns_add_u32 s68, s68, s21\ns_sub_u32 s6, s6, 1\ns_cmp_lg_u32 s6, 0\ns_cbranch_scc1 {l}")
    afirst = opt.get("a_first", 7)
    row_loop(afirst)
    k.walk(["WA0", "WA2", "WA4", "WA6"], "WA_ret")
    row_loop(16 - afirst)
    k("s_sub_u32 s68, s68, 0x4000\ns_xor_b32 s68, s68, 0x4000")
    row_loop(16)
    k.stamp(2)
    k("s_branch A_main")

    k(".p2align 6\nP_main:")
    k.walk(["WP0", "WP2", "WP4", "WP6"], "WP_ret")
    for n in range(nfirst, 8):
        wuk_load(n)
    k.wp("WP0", "WP1")
    k("s_waitcnt lgkmcnt(0)")
    k.tags()
    k.srd(52, 34, WS_USED)
    k.delta_masks(12, 3, 9)
    k(f"s_lshl_b32 s6, s{S_W}, 9\nv_add_u32 v96, s6, v4")
    k(f"s_add_u32 s6, s6, {P_QB}")
    k("v_lshrrev_b32 v9, 5, v0\nv_and_b32 v10, 1, v2\nv_lshl_add_u32 v9, v10, 1, v9\nv_lshl_add_u32 v9, v3, 2, v9\nv_lshl_add_u32 v97, v9, 2, s6")
    k("v_lshlrev_b32 v9, 6, v2\nv_lshl_add_u32 v9, v7, 4, v9\nv_lshrrev_b32 v10, 2, v3\nv_mov_b32 v11, 0x100")
    k("v_cmp_eq_u32 vcc, 0, v10\ns_nop 1\nv_cndmask_b32 v98, v11, v9, vcc\nv_cmp_eq_u32 vcc, 1, v10\ns_nop 1\nv_cndmask_b32 v99, v11, v9, vcc")
    k("v_add_u32 v98, s6, v98\nv_add_u32 v99, s6, v99")
    k("v_mov_b32 v100, 0\nv_mov_b32 v101, 0\nv_mov_b32 v102, 0\nv_mov_b32 v103, 0\nv_add_u32 v9, s6, v11\nds_write_b128 v9, v[100:103]")
    k(f"s_lshl_b32 s6, s66, 11\ns_add_u32 s6, s6, {WS_QP}\nv_add_u32 v104, s6, v4")
    k("s_lshl_b32 s7, s67, 9\ns_add_u32 s6, s6, s7\nv_add_u32 v105, s6, v4")
    k(f"s_lshl_b32 s6, s66, 9\ns_add_u32 s6, s6, s68\ns_lshl_b32 s6, s6, 2\ns_add_u32 s6, s6, {WS_QA}")
    k("v_lshlrev_b32 v9, 4, v2\nv_lshl_add_u32 v9, v10, 6, v9\nv_add_u32 v106, s6, v9")
    k("s_waitcnt vmcnt(17)")
    k.unpack8(24, 16)
    k.ln_stats(24, 10, 11, 9, 16)
    k.wp("WP1", "WP_ret")
    k("s_waitcnt vmcnt(16)")
    k.unpack8(24, 20)
    for s in range(8):
        k.ln_apply(24 + s, 10, 11, True)
    k.stamp(2)
    for s in range(8):
        A = 16 + 4 * (s & 1)
        for r in range(4):
            k(f"v_and_b32 v{A+r}, v{24+s}, v{12+r}")
        k(f"s_waitcnt vmcnt({15-s})\ns_nop 0")
        k(f"v_mfma_f32_16x16x32_bf16 v[108:111], v[{A}:{A+3}], v[{32+4*s}:{35+4*s}], " + ("0" if s == 0 else "v[108:111]"))
    k("s_mov_b32 exec_hi, 0\ns_nop 7\nds_write_b128 v96, v[108:111]\ns_mov_b64 exec, -1")
    k("s_waitcnt lgkmcnt(0)\ns_barrier")
    k.stamp(3)
    k(f"s_cmp_lg_u32 s{S_W}, 0\ns_cbranch_scc1 P_nopub")
    k("s_mov_b32 exec_hi, 0")
    for w in range(4):
        k(f"ds_read_b128 v[{16+4*w}:{19+4*w}], v4 offset:{P_QR+512*w}")
    k(f"v_mov_b32 v9, s{S_TAG12}\ns_waitcnt lgkmcnt(2)")
    for q in range(4):
        k(f"v_add_f32 v{16+q}, v{16+q}, v{20+q}")
    k("s_waitcnt lgkmcnt(0)")
    for q in range(4):
        k(f"v_add_f32 v{24+q}, v{24+q}, v{28+q}")
    for q in range(4):
        k(f"v_add_f32 v{16+q}, v{16+q}, v{24+q}")
    k(f"v_bfi_b32 v16, s{S_M12}, v9, v16")
    k("buffer_store_dwordx4 v[16:19], v105, s[52:55], 0 offen sc1\ns_mov_b64 exec, -1")
    k(f"s_waitcnt vmcnt({opt.get('polla_left', 2) + 1})\ns_branch P_polla")
    k("P_nopub:")
    k(f"s_waitcnt vmcnt({opt.get('polla_left', 2)})")
    k("P_polla:")
    k.wp("WP2", "WP3")
    k("buffer_load_dwordx4 v[32:35], v104, s[52:55], 0 offen sc1\nbuffer_load_dwordx4 v[36:39], v104, s[52:55], 0 offen offset:1024 sc1")
    k.spin()
    k(f"s_waitcnt vmcnt(0)\nv_xor_b32 v9, s{S_TAG12}, v32\nv_bitop3_b32 v9, v9, v36, s{S_TAG12} bitop3:0xf6")
    k(f"v_and_b32 v9, s{S_M12}, v9\nv_cmp_ne_u32 vcc, 0, v9\ns_cbranch_vccnz P_polla")
    k.stamp(4)
    k("v_and_b32 v32, 0xfffff000, v32\nv_and_b32 v36, 0xfffff000, v36")
    for q in range(4):
        k(f"v_add_f32 v{32+q}, v{32+q}, v{36+q}")
    k("s_nop 0\nv_permlane32_swap_b32 v32, v34\ns_nop 0\nv_permlane32_swap_b32 v33, v35")
    k("v_add_f32 v32, v32, v34\nv_add_f32 v33, v33, v35\nv_cvt_pk_bf16_f32 v32, v32, v33")
    k("ds_write_b32 v97, v32\nds_read_b128 v[16:19], v98\nds_read_b128 v[20:23], v99")
    k("s_waitcnt lgkmcnt(1)")
    for T in range(4):
        k(f"v_mfma_f32_16x16x32_bf16 v[{32+4*T}:{35+4*T}], v[{64+4*T}:{67+4*T}], v[16:19], 0")
    k("s_waitcnt lgkmcnt(0)")
    for T in range(4):
        k(f"v_mfma_f32_16x16x32_bf16 v[{32+4*T}:{35+4*T}], v[{80+4*T}:{83+4*T}], v[20:23], v[{32+4*T}:{35+4*T}]")
    k("s_nop 4")
    for u in range(1, 4):
        for T in range(4):
            D = 32 + 4 * T
            k(f"v_add_f32_dpp v{16+T}, v{D+u}, v{D if u == 1 else 16+T} quad_perm:[{u},{u},{u},{u}] row_mask:0xf bank_mask:0xf")
    for T in range(4):
        k(f"v_cvt_pk_bf16_f32 v{16+T}, s{S_TAGF}, v{16+T}")
    k("s_mov_b32 exec_lo, 0x00110011\ns_mov_b32 exec_hi, 0x00110011")
    k("buffer_store_dwordx4 v[16:19], v106, s[52:55], 0 offen sc1\ns_mov_b64 exec, -1")
    k.stamp(5)

    k.srd(44, 16, NBYTES["wuv"])
    k.srd(48, 18, NBYTES["wo"])
    k(f"s_lshl_b32 s6, s67, 7\ns_lshl_b32 s7, s{S_W}, 2\ns_add_u32 s6, s6, s7\ns_lshl_b32 s6, s6, 13\ns_lshl_b32 s7, s66, 8\ns_add_u32 s6, s6, s7")
    k("v_and_b32 v9, 1, v2\nv_lshlrev_b32 v9, 19, v9\nv_lshrrev_b32 v10, 1, v2\nv_lshl_add_u32 v9, v10, 13, v9\nv_lshl_add_u32 v9, v3, 4, v9\nv_add_u32 v9, s6, v9")
    for t in range(8):
        k(f"s_mov_b32 s6, {(16*(t&3)+2*(t>>2))*8192}\nbuffer_load_dwordx4 v[{64+4*t}:{67+4*t}], v9, s[44:47], s6 offen {NT}")
    k(f"s_lshl_b32 s6, s66, 17\ns_lshl_b32 s7, s{S_W}, 8\ns_add_u32 s6, s6, s7")
    k("v_lshlrev_b32 v10, 13, v2\nv_lshl_add_u32 v10, v3, 4, v10\nv_add_u32 v10, s6, v10\nv_add_u32 v11, 0x1000, v10")
    k.wp("WP3", "WP_ret")
    for sg in range(4):
        k(f"s_add_u32 s6, s67, {sg}\ns_and_b32 s6, s6, 3\ns_lshl_b32 s6, s6, 15")
        for t in range(8):
            R = 96 + 32 * sg + 4 * t
            k(f"buffer_load_dwordx4 v[{R}:{R+3}], v{10 + (t>>2)}, s[48:51], s6 offen offset:{(t&3)*1024} {NT}")
    k(f"s_lshl_b32 s6, s66, 4\ns_add_u32 s6, s6, {WS_ML}\nv_lshlrev_b32 v5, 9, v0\nv_add_u32 v5, s6, v5")
    k(f"s_lshl_b32 s6, s66, 10\ns_lshl_b32 s7, s67, 8\ns_add_u32 s6, s6, s7\ns_lshl_b32 s7, s{S_W}, 6\ns_add_u32 s6, s6, s7\ns_add_u32 s6, s6, {WS_CP}")
    k("v_lshrrev_b32 v6, 2, v0\nv_lshlrev_b32 v6, 15, v6\nv_lshrrev_b32 v8, 5, v0\nv_lshlrev_b32 v8, 1, v8\nv_xor_b32 v8, v8, v7\nv_lshl_add_u32 v6, v8, 4, v6\nv_add_u32 v6, s6, v6")
    k(f"s_lshl_b32 s69, s{S_W}, 12\ns_add_u32 s69, s69, {P_G}")
    k("v_bfe_u32 v8, v0, 2, 2\nv_lshl_add_u32 v8, v2, 3, v8\nv_lshlrev_b32 v8, 6, v8\nv_lshl_add_u32 v8, v7, 3, v8\nv_and_b32 v9, 1, v2\nv_lshl_add_u32 v8, v9, 5, v8\nv_add_u32 v8, s69, v8\nv_xor_b32 v9, 32, v8")
    k(f"s_lshl_b32 s6, s{S_W}, 7\ns_add_u32 s6, s6, {P_W}\nv_lshl_add_u32 v12, v0, 1, s6\nv_lshl_add_u32 v13, v2, 4, s6")
    k(f"s_mul_i32 s6, s{S_W}, 272\ns_add_u32 s6, s6, {P_CX}\nv_lshl_add_u32 v14, v3, 4, s6")
    k(f"v_mul_u32_u24 v15, 272, v7\nv_lshl_add_u32 v15, v2, 4, v15\nv_add_u32 v15, {P_CX}, v15")
    for sg in range(4):
        k(f"s_add_u32 s6, s67, {sg}\ns_and_b32 s6, s6, 3\ns_lshl_b32 s6, s6, 6\nv_add_u32 v{224+sg}, s6, v15")
    k(f"s_lshl_b32 s6, s66, 2\ns_add_u32 s6, s6, s67\ns_lshl_b32 s6, s6, 11\ns_lshl_b32 s7, s{S_W}, 9\ns_add_u32 s6, s6, s7\ns_add_u32 s6, s6, {WS_OP}\nv_add_u32 v15, s6, v4")
    k.wp("WP4", "WP5")
    for b in range(5):
        k(f"s_waitcnt vmcnt({32-8*b})")
        k.transpose8(32 + 32 * b, 64 + 32 * b)
        if b == 2:
            k.wp("WP5", "WP_ret")
    k.stamp(6)
    k.wp("WP6", "WP7")
    k("P_pollml:")
    k("buffer_load_dwordx4 v[16:19], v5, s[52:55], 0 offen sc1")
    k.spin()
    k(f"s_waitcnt vmcnt(0)\nv_cmp_ne_u32 vcc, s{S_TAG32}, v18\ns_cbranch_vccnz P_pollml")
    k.stamp(7)
    def cp_gather():
        k("s_mov_b32 m0, s69\ns_mov_b32 s6, 0")
        for n in range(4):
            k("buffer_load_dwordx4 v6, s[52:55], s6 offen sc1 lds")
            if n < 3:
                k("s_add_u32 m0, m0, 0x400\ns_add_u32 s6, s6, 0x80000")
    cp_gather()
    k("v_mov_b32 v20, v16")
    k.wave_reduce("v_max_f32", 20, 21)
    k("v_sub_f32 v16, v16, v20\nv_exp_f32 v16, v16\ns_nop 0\nv_cvt_pk_bf16_f32 v16, 0, v16\nds_write_b16_d16_hi v12, v16\nv_mul_f32 v17, v17, v16")
    k("ds_read_b128 v[24:27], v13\nds_read_b128 v[28:31], v13 offset:64")
    k.wave_reduce("v_add_f32", 17, 21)
    k("v_rcp_f32 v17, v17")
    k("P_gwait:\ns_waitcnt vmcnt(0)")
    k.stamp(8)
    for Tt in range(2):
        for s in range(2):
            for hf in range(2):
                R = 192 + 8 * Tt + 4 * s + 2 * hf
                k(f"ds_read_b64_tr_b16 v[{R}:{R+1}], v{8+Tt} offset:{2048*s+256*hf}")
    k("v_mov_b32 v21, 0")
    for i in range(4):
        R = 192 + 4 * i
        k(f"s_waitcnt lgkmcnt({6-2*i})")
        for q in range(4):
            k(f"v_bitop3_b32 v21, v21, v{R+q}, s{S_TB} bitop3:0xf6\nv_or_b32 v{R+q}, s{S_LSB}, v{R+q}")
        Tt, s = i >> 1, i & 1
        k("s_nop 1")
        k(f"v_mfma_f32_16x16x32_bf16 v[{208+4*Tt}:{211+4*Tt}], v[{R}:{R+3}], v[{24+4*s}:{27+4*s}], " + ("0" if s == 0 else f"v[{208+4*Tt}:{211+4*Tt}]"))
    k(f"v_and_b32 v21, s{S_LSB}, v21\nv_cmp_ne_u32 vcc, 0, v21\ns_cbranch_vccz P_gok")
    cp_gather()
    k.spin()
    k("s_branch P_gwait\nP_gok:")
    k.wp("WP7", "WP8")
    k("v_cvt_pk_bf16_f32 v216, v208, v209\nv_cvt_pk_bf16_f32 v217, v210, v211\ns_nop 2\nv_cvt_pk_bf16_f32 v218, v212, v213\nv_cvt_pk_bf16_f32 v219, v214, v215\ns_nop 1")
    for T in range(8):
        D = [192, 196, 200, 204, 208, 212, 228, 232][T]
        k(f"v_mfma_f32_16x16x32_bf16 v[{D}:{D+3}], v[216:219], v[{32+4*T}:{35+4*T}], 0")
    k("s_mov_b64 exec, 0xffff\ns_nop 1\nv_cvt_pk_bf16_f32 v220, v192, v196\ns_nop 0\nv_cvt_pk_bf16_f32 v221, v200, v204\ns_nop 0\nv_cvt_pk_bf16_f32 v222, v208, v212\ns_nop 0\nv_cvt_pk_bf16_f32 v223, v228, v232")
    k("ds_write_b128 v14, v[220:223]\ns_mov_b64 exec, -1\ns_waitcnt lgkmcnt(0)\ns_barrier")
    for sg in range(4):
        k(f"ds_read_b128 v[{236+4*sg}:{239+4*sg}], v{224+sg}")
    k(f"s_mov_b32 s20, 0xffff0000\ns_mov_b32 s21, 0\nv_mov_b32 v21, s{S_TAG12}")
    pend = []
    for T in range(8):
        D = 192 + 4 * T
        for sg in range(4):
            if T == 0:
                k(f"s_waitcnt lgkmcnt({3-sg})")
            k(f"v_mfma_f32_16x16x32_bf16 v[{D}:{D+3}], v[{236+4*sg}:{239+4*sg}], v[{64+32*sg+4*T}:{67+32*sg+4*T}], " + ("0" if sg == 0 else f"v[{D}:{D+3}]"))
            if T >= 3 and sg < 3:
                E = 192 + 4 * (T - 3)
                k(f"v_add_f32 v{E}, v{E}, v{E+1+sg}")
        if T == 3:
            k.wp("WP8", "WP_ret")
    for T in range(5, 8):
        E = 192 + 4 * T
        if T == 7:
            k("s_nop 1")
        for q in range(3):
            k(f"v_add_f32 v{E}, v{E}, v{E+1+q}")
    for r in range(4):
        k(f"v_cndmask_b32 v{24+r}, v{192+4*r}, v{208+4*r}, s[20:21]")
    for r in range(4):
        k(f"v_mul_f32 v{24+r}, v{24+r}, v17")
    k(f"v_bfi_b32 v24, s{S_M12}, v21, v24\ns_mov_b32 exec_hi, 0")
    k("buffer_store_dwordx4 v[24:27], v15, s[52:55], 0 offen sc1")
    k.stamp(9)
    k.dump_stamps()
    k("s_endpgm")

    k(".p2align 6\nA_main:")
    k.wp("WA0", "WA1")
    k("s_waitcnt lgkmcnt(0)")
    k.tags()
    k.srd(52, 34, WS_USED)
    k(f"v_mul_u32_u24 v5, {ROW}, v3\nv_lshl_add_u32 v5, v2, 4, v5\nv_add_u32 v6, {L_Q}, v5\nv_add_u32 v5, s69, v5")
    k(f"v_lshrrev_b32 v7, 2, v0\nv_mul_u32_u24 v7, {ROW}, v7\nv_and_b32 v8, 3, v0\nv_lshl_add_u32 v7, v8, 3, v7\ns_lshl_b32 s6, s{S_W}, 8\nv_add_u32 v7, s6, v7\nv_add_u32 v8, {64*ROW}, v7")
    k(f"s_lshl_b32 s6, s67, 15\ns_lshl_b32 s7, s{S_W}, 13\ns_add_u32 s6, s6, s7\ns_add_u32 s6, s6, {WS_QA}\nv_add_u32 v9, s6, v4\nv_add_u32 v10, 0x1000, v9")
    k(f"s_mul_i32 s6, s{S_W}, {4*ROW}\ns_add_u32 s6, s6, {L_Q}\nv_lshl_add_u32 v11, v0, 3, s6")
    k(f"s_lshl_b32 s6, s{S_W}, 10\ns_add_u32 s6, s6, {L_P}\nv_add_u32 v12, s6, v4\nv_add_u32 v13, {L_P}, v4")
    k(f"s_lshl_b32 s6, s{S_W}, 2\ns_add_u32 s6, s6, {L_M}\nv_lshl_add_u32 v14, v3, 4, s6\nv_lshlrev_b32 v15, 4, v3\nv_add_u32 v15, {L_M}, v15")
    k(f"s_lshl_b32 s6, s66, 9\ns_lshl_b32 s7, s67, 8\ns_add_u32 s6, s6, s7\ns_add_u32 s6, s6, {WS_ML}\nv_add_u32 v16, s6, v4")
    k(f"s_lshl_b32 s6, s66, 15\ns_lshl_b32 s7, s67, 14\ns_add_u32 s6, s6, s7\ns_lshl_b32 s7, s{S_W}, 8\ns_add_u32 s6, s6, s7\ns_add_u32 s6, s6, {WS_CP}")
    k("v_lshlrev_b32 v17, 12, v2\nv_lshl_add_u32 v17, v3, 4, v17\nv_add_u32 v17, s6, v17")
    k("v_mov_b32 v20, 0x3f803f80\nv_mov_b32 v21, v20\nv_mov_b32 v22, v20\nv_mov_b32 v23, v20")
    k(f"v_mov_b32 v18, s{S_TB}")
    k.walk(["WA8", "WA9", "WA10", "WA_ret2"], "WA_ret2")
    def key_frags(tau):
        for s in range(16):
            R = 64 * tau + 4 * s
            k(f"ds_read_b128 a[{R}:{R+3}], v5 offset:{tau*16*ROW + 64*s}")
    k("s_waitcnt vmcnt(16)")
    key_frags(0)
    k("s_waitcnt vmcnt(0)")
    k.stamp(3)
    k("s_barrier")
    k.wp("WA1", "WA_ret")
    def qa_loads():
        for n in range(8):
            k(f"buffer_load_dwordx4 v[{32+4*n}:{35+4*n}], v{9+(n>>2)}, s[52:55], 0 offen offset:{(n&3)*1024} sc1")
    qa_loads()
    key_frags(1)
    for kap in range(4):
        for T in range(8):
            for hf in range(2):
                R = 128 + 32 * kap + 4 * T + 2 * hf
                k(f"ds_read_b64_tr_b16 a[{R}:{R+1}], v{7+(kap>>1)} offset:{(kap&1)*32*ROW + hf*16*ROW + 32*T}")
    k.wp("WA2", "WA3")
    k("A_pollb:\nv_mov_b32 v19, 0")
    for n in range(8):
        R = 32 + 4 * n
        k(f"s_waitcnt vmcnt({7-n})")
        k(f"v_perm_b32 v{64+2*n}, v{R+1}, v{R}, s{S_SELHI}\nv_perm_b32 v{65+2*n}, v{R+3}, v{R+2}, s{S_SELHI}")
        k(f"ds_write_b64 v11, v[{64+2*n}:{65+2*n}] offset:{(n>>1)*ROW + (n&1)*512}")
        k(f"v_bitop3_b32 v19, v19, v{R}, s{S_TAG16} bitop3:0xf6\nv_bitop3_b32 v19, v19, v{R+3}, s{S_TAG16} bitop3:0xf6")
    k("v_and_b32 v19, 0xffff, v19\nv_cmp_ne_u32 vcc, 0, v19\ns_cbranch_vccz A_gotq")
    qa_loads()
    k.spin()
    k("s_branch A_pollb\nA_gotq:")
    k("s_waitcnt lgkmcnt(0)\ns_barrier")
    k.stamp(4)
    for s in range(16):
        k(f"ds_read_b128 v[{64+4*s}:{67+4*s}], v6 offset:{64*s}")
    k(f"s_mul_i32 s20, s{S_XCD}, 11\ns_add_u32 s20, s20, s{S_SLOT}\ns_cmp_lt_u32 s{S_SLOT}, 11\ns_cselect_b32 s20, s20, 99")
    k.wp("WA3", "WA_ret")
    SC = hex(f2u(128 ** -0.5))
    LOG2E = hex(f2u(math.log2(math.e)))
    k(f"s_mov_b32 s21, {LOG2E}")
    def rnd(v):
        return [f"v_cvt_pk_bf16_f32 v{v}, 0, v{v}", f"v_mul_f32 v{v}, {SC}, v{v}", f"v_cvt_pk_bf16_f32 v{v}, 0, v{v}"]
    for s in range(16):
        k(f"s_waitcnt lgkmcnt({15-s})")
        k(f"v_mfma_f32_16x16x32_bf16 v[24:27], a[{4*s}:{4*s+3}], v[{64+4*s}:{67+4*s}], " + ("0" if s == 0 else "v[24:27]"))
    fill = sum([rnd(24 + r) for r in range(4)], []) + ["v_max3_f32 v32, v24, v25, v26", "v_max_f32 v32, v32, v27"]
    for s in range(16):
        k(f"v_mfma_f32_16x16x32_bf16 v[28:31], a[{64+4*s}:{64+4*s+3}], v[{64+4*s}:{67+4*s}], " + ("0" if s == 0 else "v[28:31]"))
        if s >= 8:
            for _ in range(2):
                if fill:
                    k(fill.pop(0))
    assert not fill
    k("s_nop 7")
    for r in range(4):
        for x in rnd(28 + r):
            k(x)
    k("v_max3_f32 v32, v32, v28, v29\nv_max3_f32 v32, v32, v30, v31")
    for sw in ("v_permlane16_swap_b32", "v_permlane32_swap_b32"):
        k(f"v_mov_b32 v33, v32\ns_nop 1\n{sw} v33, v32\nv_max_f32 v32, v32, v33")
    k("v_mul_f32 v32, s21, v32\nv_ceil_f32 v32, v32")
    k.wp("WA4", "WA5")
    for r in range(8):
        k(f"v_fma_f32 v{24+r}, v{24+r}, s21, -v32")
    k("ds_write_b32 v14, v32")
    for r in range(8):
        k(f"v_exp_f32 v{24+r}, v{24+r}")
    k("s_nop 0")
    for q in range(4):
        k(f"v_cvt_pk_bf16_f32 v{36+q}, v{24+2*q}, v{25+2*q}")
    k("ds_write_b128 v12, v[36:39]\ns_waitcnt lgkmcnt(0)\ns_barrier")
    k.stamp(5)
    k("ds_read_b128 v[28:31], v15")
    for kap in range(4):
        k(f"ds_read_b128 v[{40+4*kap}:{43+4*kap}], v13 offset:{1024*kap}")
    k("s_waitcnt lgkmcnt(4)\nv_max3_f32 v24, v28, v29, v30\nv_max_f32 v24, v24, v31")
    for kap in range(4):
        k(f"v_sub_f32 v{28+kap}, v24, v{28+kap}\nv_min_f32 v{28+kap}, 0x437f0000, v{28+kap}\nv_cvt_u32_f32 v{28+kap}, v{28+kap}\nv_mul_u32_u24 v{28+kap}, 0x00800080, v{28+kap}")
        k(f"s_waitcnt lgkmcnt({3-kap})")
        for q in range(4):
            k(f"v_pk_sub_u16 v{40+4*kap+q}, v{40+4*kap+q}, v{28+kap} clamp")
        k("s_nop 1")
        k(f"v_mfma_f32_16x16x32_bf16 v[32:35], v[20:23], v[{40+4*kap}:{43+4*kap}], " + ("0" if kap == 0 else "v[32:35]"))
        k(f"v_mfma_f32_16x16x32_bf16 v[64:67], v[{40+4*kap}:{43+4*kap}], a[{128+32*kap}:{131+32*kap}], " + ("0" if kap == 0 else "v[64:67]"))
    k.wp("WA5", "WA_ret")
    fill = []
    for T in range(1, 8):
        D = 64 + 4 * T
        for kap in range(4):
            k(f"v_mfma_f32_16x16x32_bf16 v[{D}:{D+3}], v[{40+4*kap}:{43+4*kap}], a[{128+32*kap+4*T}:{131+32*kap+4*T}], " + ("0" if kap == 0 else f"v[{D}:{D+3}]"))
            for _ in range(2):
                if fill:
                    k(fill.pop(0))
        if T == 2:
            k(f"s_cmp_lg_u32 s{S_W}, 0\ns_cbranch_scc1 A_noml")
            k(f"v_mov_b32 v25, v32\nv_mov_b32 v26, s{S_TAG32}\nv_mov_b32 v27, s{S_TAG32}\ns_mov_b64 exec, 0xffff")
            k("buffer_store_dwordx4 v[24:27], v16, s[52:55], 0 offen sc1\ns_mov_b64 exec, -1\nA_noml:")
        if T in (3, 5):
            q = (T - 3) // 2
            for r in range(4):
                fill += [f"v_perm_b32 v{96+4*r+q}, v{64+8*q+4+r}, v{64+8*q+r}, s{S_SELHI}", f"v_bfi_b32 v{96+4*r+q}, s{S_LSB}, v18, v{96+4*r+q}"]
    assert not fill
    for r in range(4):
        k(f"v_perm_b32 v{96+4*r+2}, v{64+16+4+r}, v{64+16+r}, s{S_SELHI}\nv_bfi_b32 v{96+4*r+2}, s{S_LSB}, v18, v{96+4*r+2}")
    for r in range(4):
        k(f"v_perm_b32 v{96+4*r+3}, v{64+24+4+r}, v{64+24+r}, s{S_SELHI}\nv_bfi_b32 v{96+4*r+3}, s{S_LSB}, v18, v{96+4*r+3}")
        k(f"buffer_store_dwordx4 v[{96+4*r}:{99+4*r}], v17, s[52:55], 0 offen offset:{1024*r} sc1")
    k.stamp(6)
    k.wp("WA6", "WA7")
    k("s_cmp_lt_u32 s20, 86\ns_cbranch_scc1 M_main")
    k(f"s_cmp_lt_u32 s{S_SLOT}, 12\ns_cbranch_scc1 A_done\ns_cmp_lg_u32 s{S_W}, 0\ns_cbranch_scc1 A_done")

    k(f"s_lshl_b32 s20, s{S_XCD}, 2\ns_add_u32 s20, s20, s{S_SLOT}\ns_sub_u32 s20, s20, 12")
    k("s_lshr_b32 s6, s20, 3\ns_lshl_b32 s6, s6, 7\ns_and_b32 s7, s20, 3\ns_lshl_b32 s7, s7, 5\ns_add_u32 s6, s6, s7\ns_and_b32 s7, s20, 4\ns_add_u32 s6, s6, s7")
    k("v_and_b32 v5, 3, v0\nv_lshl_add_u32 v6, v5, 3, v2\nv_add_u32 v6, s6, v6\nv_lshlrev_b32 v6, 1, v6")
    k("v_mov_b32 v7, 0\nv_mov_b32 v8, 0\nglobal_load_short_d16_hi v7, v6, s[8:9]\nglobal_load_short_d16_hi v8, v6, s[28:29]")
    k("v_lshrrev_b32 v9, 2, v0\nv_min_u32 v10, 5, v9\nv_lshlrev_b32 v9, 11, v9\nv_lshlrev_b32 v10, 11, v10\nv_lshl_add_u32 v9, v5, 4, v9\nv_lshl_add_u32 v10, v5, 4, v10")
    k(f"s_lshl_b32 s6, s20, 6\ns_add_u32 s7, s6, {WS_OP}\nv_add_u32 v11, s7, v9\ns_add_u32 s7, s6, {WS_MP}\nv_add_u32 v9, s7, v9\nv_add_u32 v10, s7, v10")
    reduce_rows(k, 32, 6, (9, 32768), 6, 12, "R_pollm")
    k.stamp(7)
    k.wp("WA7", "WA_ret")
    k("v_cvt_pk_bf16_f32 v12, 0, v12\nv_add_f32 v12, v12, v8\nv_cvt_pk_bf16_f32 v12, 0, v12")
    k(f"v_mul_f32 v13, {hex(f2u(-math.log2(math.e)))}, v12\nv_exp_f32 v13, v13\ns_nop 0\nv_add_f32 v13, 1.0, v13\nv_rcp_f32 v13, v13\ns_nop 0\nv_mul_f32 v12, v12, v13\nv_cvt_pk_bf16_f32 v12, 0, v12")
    reduce_rows(k, 32, 8, (11, 32768), 0, 13, "R_pollo")
    k.stamp(8)
    k("v_cvt_pk_bf16_f32 v13, 0, v13\nv_mul_f32 v13, v13, v12\nv_cvt_pk_bf16_f32 v13, 0, v13\nv_add_f32 v13, v13, v7\nv_cvt_pk_bf16_f32 v13, 0, v13")
    k("s_mov_b32 exec_lo, 0x000f000f\ns_mov_b32 exec_hi, 0x000f000f\nglobal_store_short_d16_hi v6, v13, s[30:31]")
    k("s_cmp_lg_u32 s20, 0\ns_cbranch_scc1 A_done")
    k(f"s_mov_b64 exec, 1\nv_mov_b32 v5, 0\nv_mov_b32 v7, s{S_TAG32}\nglobal_store_dword v5, v7, s[34:35]")
    k("A_done:")
    k.stamp(9)
    k.dump_stamps()
    k("s_endpgm")

    k("M_main:")
    k.wp("WA8", "WA_ret2")
    k.srd(44, 22, NBYTES["w1"])
    k.srd(48, 26, NBYTES["w2"])
    k("global_load_dwordx4 v[24:27], v4, s[8:9]")
    k(f"s_mul_i32 s6, s{S_W}, {128*2752}\ns_lshl_b32 s7, s20, 5\ns_add_u32 s6, s6, s7")
    k(f"v_lshrrev_b32 v5, 1, v0\nv_mul_u32_u24 v6, {4*2752}, v5\nv_and_b32 v7, 1, v0\nv_lshl_add_u32 v6, v7, 4, v6\nv_add_u32 v6, s6, v6")
    for n in range(4):
        k(f"s_movk_i32 s6, {n*2752}\nbuffer_load_dwordx4 v[{128+4*n}:{131+4*n}], v6, s[44:47], s6 offen {NT}")
    k("v_lshl_add_u32 v8, v2, 3, s7\nglobal_load_dwordx2 v[28:29], v8, s[24:25]")
    k(f"s_lshl_b32 s6, s20, 14\ns_lshl_b32 s7, s{S_W}, 8\ns_add_u32 s6, s6, s7\nv_lshlrev_b32 v8, 12, v2\nv_lshl_add_u32 v8, v3, 4, v8\nv_add_u32 v8, s6, v8")
    for s in range(4):
        k(f"buffer_load_dwordx4 v[{144+4*s}:{147+4*s}], v8, s[48:51], 0 offen offset:{1024*s} {NT}")
    k.delta_masks(12, 3, 9)
    k("s_waitcnt vmcnt(9)")
    k.unpack8(32, 24)
    k.ln_stats(32, 10, 11, 9, 16)
    for i in range(8):
        k.ln_apply(32 + i, 10, 11, False)
    k.wp("WA9", "WA_ret2")
    k.ln_stats(32, 10, 11, 9, 16)
    for i in range(8):
        k.ln_apply(32 + i, 10, 11, False)
    k(f"v_lshlrev_b32 v9, 5, v0\nv_add_u32 v9, {L_Y}, v9\nds_write_b128 v9, v[32:35]\nds_write_b128 v9, v[36:39] offset:16")
    k(f"s_lshl_b32 s6, s{S_W}, 9\ns_add_u32 s6, s6, {L_Y}\nv_lshl_add_u32 v9, v5, 4, s6\nds_read_b128 v[40:43], v9")
    k("s_waitcnt lgkmcnt(0)")
    for n in range(4):
        k(f"s_waitcnt vmcnt({8-n})")
        k.unpack8(48, 128 + 4 * n)
        for e in range(8):
            k(f"v_mul_f32 v{32+e}, v{48+e}, v40" if n == 0 else f"v_fmac_f32 v{32+e}, v{48+e}, v{40+n}")
    k.wp("WA10", "WA_ret2")
    k("s_nop 1")
    for e in range(4):
        k(f"v_permlane32_swap_b32 v{32+e}, v{36+e}")
    for e in range(4):
        k(f"v_add_f32 v{32+e}, v{32+e}, v{36+e}")
    k("s_nop 1\nv_permlane16_swap_b32 v32, v34\nv_permlane16_swap_b32 v33, v35\nv_add_f32 v32, v32, v34\nv_add_f32 v33, v33, v35")
    for m in ("row_ror:2", "row_ror:4", "row_ror:8"):
        k(f"s_nop 1\nv_add_f32_dpp v32, v32, v32 {m} row_mask:0xf bank_mask:0xf\nv_add_f32_dpp v33, v33, v33 {m} row_mask:0xf bank_mask:0xf")
    k(f"s_lshl_b32 s6, s{S_W}, 6\ns_add_u32 s6, s6, {L_H}\nv_lshlrev_b32 v9, 5, v7\nv_lshl_add_u32 v9, v2, 3, v9\nv_add_u32 v9, s6, v9\nds_write_b64 v9, v[32:33]")
    k(f"v_lshlrev_b32 v9, 4, v2\nv_add_u32 v9, {L_H}, v9\ns_waitcnt lgkmcnt(0)\ns_barrier")
    for w in range(4):
        k(f"ds_read_b128 v[{32+4*w}:{35+4*w}], v9 offset:{64*w}")
    k("s_waitcnt vmcnt(4)\nv_lshlrev_b32 v48, 16, v28\nv_and_b32 v49, 0xffff0000, v28\nv_lshlrev_b32 v50, 16, v29\nv_and_b32 v51, 0xffff0000, v29\ns_waitcnt lgkmcnt(0)")
    C1 = -2.0 * math.sqrt(2.0 / math.pi) * math.log2(math.e)
    k(f"s_mov_b32 s6, {hex(f2u(C1*0.044715))}\nv_mov_b32 v52, {hex(f2u(C1))}")
    for s in range(4):
        x = 32 + s
        k(f"v_add_f32 v{x}, v{x}, v{36+s}\nv_add_f32 v{40+s}, v{40+s}, v{44+s}\nv_add_f32 v{x}, v{x}, v{40+s}")
        k(f"v_cvt_pk_bf16_f32 v{x}, 0, v{x}\nv_add_f32 v{x}, v{x}, v{48+s}\nv_cvt_pk_bf16_f32 v{x}, 0, v{x}")
        k(f"v_mul_f32 v53, v{x}, v{x}\nv_fma_f32 v53, v53, s6, v52\nv_mul_f32 v53, v53, v{x}\nv_exp_f32 v53, v53\ns_nop 0\nv_add_f32 v53, 1.0, v53\nv_rcp_f32 v53, v53\ns_nop 0")
        k(f"v_mul_f32 v{x}, v{x}, v53\nv_cvt_pk_bf16_f32 v{x}, v{x}, v{x}")
    for s in range(4):
        A = 40 + 4 * (s & 1)
        for r in range(4):
            k(f"v_and_b32 v{A+r}, v{32+s}, v{12+r}")
        k(f"s_waitcnt vmcnt({3-s})\ns_nop 0")
        k(f"v_mfma_f32_16x16x32_bf16 v[56:59], v[{A}:{A+3}], v[{144+4*s}:{147+4*s}], " + ("0" if s == 0 else "v[56:59]"))
    k(f"s_lshl_b32 s6, s20, 11\ns_lshl_b32 s7, s{S_W}, 9\ns_add_u32 s6, s6, s7\ns_add_u32 s6, s6, {WS_MP}\nv_add_u32 v9, s6, v4\nv_mov_b32 v10, s{S_TAG12}\ns_nop 3")
    k(f"v_bfi_b32 v56, s{S_M12}, v10, v56\ns_mov_b32 exec_hi, 0")
    k("buffer_store_dwordx4 v[56:59], v9, s[52:55], 0 offen sc1")
    k.stamp(9)
    k.dump_stamps()
    k("L_end:\ns_endpgm")
    return k.text()


HEADER = open("cdna_kernels/" + NAME + ".s.ref").read().split("; Override launch")[0]

def emit(path, opt):
    body = build(opt)
    open(path, "w").write(wrap(body, 256, 256, LDS_BYTES, 512, 256, 102, HEADER))

if __name__ == "__main__":
    opt = {}
    for a in sys.argv[2:]:
        kk, v = a.split("=")
        opt[kk] = int(v)
    emit(sys.argv[1], opt)
```

```python
import sys, struct, math
from asmlib import *

def f2u(x):
    return struct.unpack("<I", struct.pack("<f", x))[0]

WS_QP = 0x010000
WS_QA = 0x020000
WS_ML = 0x030000
WS_OP = 0x040000
WS_MP = 0x080000
WS_CP = 0x200000
WS_USED = 0x400000
STAMP_OFF = 200 << 20

ROW = 1056
L_TILE = 0
L_Q = 128 * ROW
L_P = L_Q + 16 * ROW
L_M = L_P + 4096
L_Y = L_M + 256
L_H = L_Y + 2048
LDS_BYTES = L_H + 256
P_QR = 0
P_QB = 2048
P_W = 4096
P_CX = 4608
P_G = 8192

S_W, S_XCD, S_SLOT = 3, 4, 5
S_TAG32, S_TAG12, S_TAGF, S_TAG16, S_TB, S_LSB, S_M12, S_SELHI, S_SPIN = 56, 57, 58, 59, 60, 61, 62, 63, 64
S_SELLO = 65
SPIN_MAX = 1 << 20


class K(Asm):
    def __init__(self, opt):
        super().__init__()
        self.opt = opt
        self.nlab = 0
        self.stamps = opt.get("stamps", False)

    def lab(self, p="L"):
        self.nlab += 1
        return f"{p}_{self.nlab}"

    def stamp(self, i):
        if self.stamps:
            self(f"s_memrealtime s[{70+2*i}:{71+2*i}]")

    def dump_stamps(self):
        if not self.stamps:
            return
        self("s_mov_b64 exec, -1\ns_waitcnt lgkmcnt(0)\nv_mov_b32 v250, 0")
        for i in range(15):
            self(f"v_writelane_b32 v250, s{70+2*i}, {i}")
        self(f"v_writelane_b32 v250, s{S_SPIN}, 15")
        self(f"s_lshl_b32 s6, s2, 2\ns_add_u32 s6, s6, s{S_W}\ns_lshl_b32 s6, s6, 6\ns_add_u32 s6, s6, {STAMP_OFF}")
        self("v_mbcnt_lo_u32_b32 v251, -1, 0\nv_lshlrev_b32 v251, 2, v251\nv_add_u32 v251, s6, v251")
        self("s_mov_b64 exec, 0xffff\nglobal_store_dword v251, v250, s[34:35]")

    def srd(self, q, ptr, nbytes):
        self(f"s_mov_b32 s{q}, s{ptr}\ns_mov_b32 s{q+1}, s{ptr+1}\ns_mov_b32 s{q+2}, {nbytes}\ns_mov_b32 s{q+3}, 0x20000")

    def spin(self):
        self(f"s_add_u32 s{S_SPIN}, s{S_SPIN}, 1\ns_cmp_gt_u32 s{S_SPIN}, {SPIN_MAX}\ns_cbranch_scc1 L_end")

    def unpack8(self, dst, src):
        for q in range(4):
            self(f"v_lshlrev_b32 v{dst+2*q}, 16, v{src+q}\nv_and_b32 v{dst+2*q+1}, 0xffff0000, v{src+q}")

    def wave_reduce(self, op, x, t):
        for m in ("quad_perm:[1,0,3,2]", "quad_perm:[2,3,0,1]", "row_ror:4", "row_ror:8"):
            self(f"s_nop 1\n{op}_dpp v{x}, v{x}, v{x} {m} row_mask:0xf bank_mask:0xf")
        for sw in ("v_permlane16_swap_b32", "v_permlane32_swap_b32"):
            self(f"v_mov_b32 v{t}, v{x}\ns_nop 1\n{sw} v{t}, v{x}\n{op} v{x}, v{x}, v{t}")

    def ln_stats(self, f, mb, r, t0, t1):
        self(f"v_add_f32 v{mb}, v{f}, v{f+1}\nv_add_f32 v{t0}, v{f+2}, v{f+3}\nv_add_f32 v{t1}, v{f+4}, v{f+5}\nv_add_f32 v{r}, v{f+6}, v{f+7}")
        self(f"v_add_f32 v{mb}, v{mb}, v{t0}\nv_add_f32 v{t1}, v{t1}, v{r}\nv_add_f32 v{mb}, v{mb}, v{t1}")
        self.wave_reduce("v_add_f32", mb, t0)
        self(f"v_mul_f32 v{mb}, {hex(f2u(1/512))}, v{mb}")
        for i in range(8):
            self(f"v_sub_f32 v{t0}, v{f+i}, v{mb}")
            self(f"v_mul_f32 v{r}, v{t0}, v{t0}" if i == 0 else f"v_fmac_f32 v{r}, v{t0}, v{t0}")
        self.wave_reduce("v_add_f32", r, t0)
        self(f"v_mul_f32 v{r}, {hex(f2u(1/512))}, v{r}\nv_cvt_pk_bf16_f32 v{mb}, 0, v{mb}\nv_cvt_pk_bf16_f32 v{r}, 0, v{r}")
        self(f"v_add_f32 v{r}, {hex(f2u(1e-5))}, v{r}\nv_cvt_pk_bf16_f32 v{r}, 0, v{r}\nv_sqrt_f32 v{r}, v{r}\ns_nop 0")
        self(f"v_cvt_pk_bf16_f32 v{r}, 0, v{r}\nv_rcp_f32 v{r}, v{r}\ns_nop 0")

    def ln_apply(self, v, mb, r, dup):
        self(f"v_sub_f32 v{v}, v{v}, v{mb}\nv_cvt_pk_bf16_f32 v{v}, 0, v{v}\nv_mul_f32 v{v}, v{v}, v{r}")
        self(f"v_cvt_pk_bf16_f32 v{v}, v{v}, v{v}" if dup else f"v_cvt_pk_bf16_f32 v{v}, 0, v{v}")

    def delta_masks(self, m, vj, t):
        self(f"v_and_b32 v{t}, 1, v{vj}\nv_cmp_eq_u32 vcc, 1, v{t}\nv_mov_b32 v{t}, 0xffff\nv_mov_b32 v{m}, 0xffff0000\nv_cndmask_b32 v{t}, v{t}, v{m}, vcc")
        self(f"v_lshrrev_b32 v{m+3}, 1, v{vj}")
        for r in range(4):
            self(f"v_cmp_eq_u32 vcc, {r}, v{m+3}\ns_nop 1\nv_cndmask_b32 v{m+r}, 0, v{t}, vcc")

    def tags(self):
        self(f"s_add_u32 s{S_TAG32}, s{S_TAG32}, 1\ns_and_b32 s{S_TAG12}, s{S_TAG32}, 0xfff")
        self(f"s_and_b32 s{S_TAG16}, s{S_TAG32}, 0x1fff\ns_or_b32 s{S_TAG16}, s{S_TAG16}, 0x4000\ns_lshl_b32 s{S_TAGF}, s{S_TAG16}, 16")
        self(f"s_mov_b32 s{S_LSB}, 0x00010001\ns_bitcmp1_b32 s{S_TAG32}, 0\ns_cselect_b32 s{S_TB}, s{S_LSB}, 0")
        self(f"s_movk_i32 s{S_M12}, 0xfff\ns_mov_b32 s{S_SELHI}, 0x07060302\ns_mov_b32 s{S_SELLO}, 0x05040100")

    def transpose8(self, dst, src):
        for T in range(8):
            for a in range(4):
                sel = S_SELHI if T & 1 else S_SELLO
                self(f"v_perm_b32 v{dst+4*T+a}, v{src+4*(2*a+1)+(T>>1)}, v{src+4*(2*a)+(T>>1)}, s{sel}")

    def wp(self, name, nxt):
        if self.opt.get("walk", True):
            self(f"{name}:\ns_cbranch_execz {nxt}")

    def walk(self, starts, ret):
        if not self.opt.get("walk", True):
            return
        self("s_mov_b64 exec, 0")
        for w in range(3):
            self(f"s_cmp_eq_u32 s{S_W}, {w}\ns_cbranch_scc1 {starts[w]}")
        self(f"s_branch {starts[3]}\n{ret}:\ns_mov_b64 exec, -1")


def reduce_rows(k, base, n, vaddr_soff, nvalid_last, dst, lab):
    vaddr, stride = vaddr_soff
    R = base
    k(f"{lab}:")
    for i in range(n):
        va = vaddr + (1 if (nvalid_last and i == n - 1) else 0)
        k(f"s_mov_b32 s6, {i*stride}\nbuffer_load_dwordx4 v[{R+4*i}:{R+4*i+3}], v{va}, s[52:55], s6 offen sc1")
    k.spin()
    t = R + 4 * n
    k(f"v_mov_b32 v{t}, 0")
    for i in range(n):
        k(f"s_waitcnt vmcnt({n-1-i})\nv_bitop3_b32 v{t}, v{t}, v{R+4*i}, s{S_TAG12} bitop3:0xf6")
    k(f"v_and_b32 v{t}, s{S_M12}, v{t}\nv_cmp_ne_u32 vcc, 0, v{t}\ns_cbranch_vccnz {lab}")
    for i in range(n):
        k(f"v_and_b32 v{R+4*i}, 0xfffff000, v{R+4*i}")
    if nvalid_last:
        k(f"s_mov_b64 exec, {hex((1 << (4*nvalid_last)) - 1)}")
        for q in range(4):
            k(f"v_add_f32 v{R+q}, v{R+q}, v{R+4*(n-1)+q}")
        k("s_mov_b64 exec, -1")
        n -= 1
    live = list(range(n))
    while len(live) > 1:
        nxt = []
        for a in range(0, len(live) - 1, 2):
            for q in range(4):
                k(f"v_add_f32 v{R+4*live[a]+q}, v{R+4*live[a]+q}, v{R+4*live[a+1]+q}")
            nxt.append(live[a])
        if len(live) & 1:
            nxt.append(live[-1])
        live = nxt
    k(f"s_nop 1\nv_permlane32_swap_b32 v{R}, v{R+2}\nv_permlane32_swap_b32 v{R+1}, v{R+3}")
    k(f"v_add_f32 v{R}, v{R}, v{R+2}\nv_add_f32 v{R+1}, v{R+1}, v{R+3}\ns_nop 1\nv_permlane16_swap_b32 v{R}, v{R+1}")
    k(f"v_add_f32 v{dst}, v{R}, v{R+1}")
    for m in ("row_ror:4", "row_ror:8"):
        k(f"s_nop 1\nv_add_f32_dpp v{dst}, v{dst}, v{dst} {m} row_mask:0xf bank_mask:0xf")


def build(opt):
    k = K(opt)
    NT = "nt"
    k.stamp(0)
    if opt.get("diag_pad"):
        k("s_memrealtime s[70:71]")
    k("s_load_dwordx16 s[8:23], s[0:1], 0\ns_load_dwordx8 s[24:31], s[0:1], 64\ns_load_dwordx4 s[32:35], s[0:1], 96")
    k("s_cmp_ge_u32 s2, 256\ns_cbranch_scc1 L_end")
    k(f"v_lshrrev_b32 v1, 6, v0\nv_and_b32 v0, 63, v0\nv_readfirstlane_b32 s{S_W}, v1")
    k(f"s_and_b32 s{S_XCD}, s2, 7\ns_lshr_b32 s{S_SLOT}, s2, 3\ns_mov_b32 s{S_SPIN}, 0")
    k("v_lshrrev_b32 v2, 4, v0\nv_and_b32 v3, 15, v0\nv_lshlrev_b32 v4, 4, v0")
    k(f"s_and_b32 s66, s{S_SLOT}, 3\ns_lshl_b32 s6, s{S_XCD}, 2\ns_add_u32 s66, s66, s6")
    k(f"s_bfe_u32 s67, s{S_SLOT}, 0x20002")
    k(f"s_lshl_b32 s6, s67, 2\ns_add_u32 s6, s6, s{S_W}\ns_lshl_b32 s68, s6, 5")
    k("s_lshl_b32 s6, s68, 13\ns_lshl_b32 s7, s66, 8\ns_add_u32 s69, s6, s7")
    k("v_lshlrev_b32 v5, 16, v2\nv_lshl_add_u32 v5, v3, 4, v5\nv_add_u32 v5, s69, v5")
    k("s_movk_i32 s7, 0x2000")
    k(f"s_cmp_lt_u32 s{S_SLOT}, 16\ns_cbranch_scc1 A_entry")

    k("v_bfe_u32 v6, v0, 2, 2\nv_lshlrev_b32 v6, 15, v6\nv_lshl_add_u32 v6, v2, 6, v6\nv_and_b32 v7, 3, v0\nv_lshl_add_u32 v6, v7, 4, v6\nv_add_u32 v6, s69, v6")
    k("s_lshl_b32 s6, s68, 1\nv_lshl_add_u32 v8, v2, 4, s6")
    k("s_waitcnt lgkmcnt(0)")
    k.stamp(1)
    k(f"s_load_dword s{S_TAG32}, s[34:35], 0")
    k("global_load_dwordx4 v[16:19], v4, s[8:9]\nglobal_load_dwordx4 v[20:23], v8, s[8:9]")
    k.srd(36, 12, NBYTES["wq"])
    k("s_mov_b32 s6, 0")
    for s in range(8):
        k(f"buffer_load_dwordx4 v[{32+4*s}:{35+4*s}], v5, s[36:39], s6 offen {NT}")
        if s < 7:
            k("s_add_u32 s6, s6, s7")
    k.srd(40, 14, NBYTES["wuk"])
    nfirst = opt.get("p_first", 3)
    def wuk_load(n):
        v, T = n >> 2, n & 3
        k(f"s_mov_b32 s6, {(16*v+T)*8192}\nbuffer_load_dwordx4 v[{64+4*n}:{67+4*n}], v6, s[40:43], s6 offen {NT}")
    for n in range(nfirst):
        wuk_load(n)
    k("s_branch P_main")

    k("A_entry:")
    k(f"s_lshr_b32 s6, s{S_SLOT}, 1\ns_lshl_b32 s66, s{S_XCD}, 3\ns_add_u32 s66, s66, s6")
    k(f"s_and_b32 s67, s{S_SLOT}, 1")
    k(f"s_lshl_b32 s6, s66, 2\ns_add_u32 s6, s6, s{S_W}\ns_lshl_b32 s68, s6, 15\ns_lshl_b32 s6, s67, 14\ns_add_u32 s68, s68, s6")
    k(f"s_mul_i32 s69, s{S_W}, {32*ROW}")
    k("s_waitcnt lgkmcnt(0)")
    k.stamp(1)
    k(f"s_load_dword s{S_TAG32}, s[34:35], 0")
    k.srd(36, 10, NBYTES["ckv"])
    ndummy = opt.get("a_dummy", 4)
    if ndummy:
        k.srd(40, 12, NBYTES["wq"])
        k(f"s_mov_b32 s6, {(8-ndummy)*8192}")
        for s in range(ndummy):
            k(f"buffer_load_dwordx4 v[{32+4*s}:{35+4*s}], v5, s[40:43], s6 offen {NT}")
            if s < ndummy - 1:
                k("s_add_u32 s6, s6, s7")
    k(f"s_mov_b32 m0, s69\ns_movk_i32 s20, {ROW}\ns_movk_i32 s21, 0x400")
    def row_loop(n):
        l = k.lab("A_rows")
        k(f"s_mov_b32 s6, {n}\n{l}:")
        k(f"buffer_load_dwordx4 v4, s[36:39], s68 offen {NT} lds")
        k(f"s_add_u32 m0, m0, s20\ns_add_u32 s68, s68, s21\ns_sub_u32 s6, s6, 1\ns_cmp_lg_u32 s6, 0\ns_cbranch_scc1 {l}")
    afirst = opt.get("a_first", 7)
    row_loop(afirst)
    k.walk(["WA0", "WA2", "WA4", "WA6"], "WA_ret")
    row_loop(16 - afirst)
    k("s_sub_u32 s68, s68, 0x4000\ns_xor_b32 s68, s68, 0x4000")
    row_loop(16)
    k.stamp(2)
    k("s_branch A_main")

    k(".p2align 6\nP_main:")
    k.walk(["WP0", "WP2", "WP4", "WP6"], "WP_ret")
    for n in range(nfirst, 8):
        wuk_load(n)
    k.wp("WP0", "WP1")
    k("s_waitcnt lgkmcnt(0)")
    k.tags()
    k.srd(52, 34, WS_USED)
    k.delta_masks(12, 3, 9)
    k(f"s_lshl_b32 s6, s{S_W}, 9\nv_add_u32 v96, s6, v4")
    k(f"s_add_u32 s6, s6, {P_QB}")
    k("v_lshrrev_b32 v9, 5, v0\nv_and_b32 v10, 1, v2\nv_lshl_add_u32 v9, v10, 1, v9\nv_lshl_add_u32 v9, v3, 2, v9\nv_lshl_add_u32 v97, v9, 2, s6")
    k("v_lshlrev_b32 v9, 6, v2\nv_lshl_add_u32 v9, v7, 4, v9\nv_lshrrev_b32 v10, 2, v3\nv_mov_b32 v11, 0x100")
    k("v_cmp_eq_u32 vcc, 0, v10\ns_nop 1\nv_cndmask_b32 v98, v11, v9, vcc\nv_cmp_eq_u32 vcc, 1, v10\ns_nop 1\nv_cndmask_b32 v99, v11, v9, vcc")
    k("v_add_u32 v98, s6, v98\nv_add_u32 v99, s6, v99")
    k("v_mov_b32 v100, 0\nv_mov_b32 v101, 0\nv_mov_b32 v102, 0\nv_mov_b32 v103, 0\nv_add_u32 v9, s6, v11\nds_write_b128 v9, v[100:103]")
    k(f"s_lshl_b32 s6, s66, 11\ns_add_u32 s6, s6, {WS_QP}\nv_add_u32 v104, s6, v4")
    k("s_lshl_b32 s7, s67, 9\ns_add_u32 s6, s6, s7\nv_add_u32 v105, s6, v4")
    k(f"s_lshl_b32 s6, s66, 9\ns_add_u32 s6, s6, s68\ns_lshl_b32 s6, s6, 2\ns_add_u32 s6, s6, {WS_QA}")
    k("v_lshlrev_b32 v9, 4, v2\nv_lshl_add_u32 v9, v10, 6, v9\nv_add_u32 v106, s6, v9")
    k("s_waitcnt vmcnt(17)")
    k.unpack8(24, 16)
    k.ln_stats(24, 10, 11, 9, 16)
    k.wp("WP1", "WP_ret")
    k("s_waitcnt vmcnt(16)")
    k.unpack8(24, 20)
    for s in range(8):
        k.ln_apply(24 + s, 10, 11, True)
    k.stamp(2)
    for s in range(8):
        A = 16 + 4 * (s & 1)
        for r in range(4):
            k(f"v_and_b32 v{A+r}, v{24+s}, v{12+r}")
        k(f"s_waitcnt vmcnt({15-s})\ns_nop 0")
        k(f"v_mfma_f32_16x16x32_bf16 v[108:111], v[{A}:{A+3}], v[{32+4*s}:{35+4*s}], " + ("0" if s == 0 else "v[108:111]"))
    k("s_mov_b32 exec_hi, 0\ns_nop 7\nds_write_b128 v96, v[108:111]\ns_mov_b64 exec, -1")
    k("s_waitcnt lgkmcnt(0)\ns_barrier")
    k.stamp(3)
    k(f"s_cmp_lg_u32 s{S_W}, 0\ns_cbranch_scc1 P_nopub")
    k("s_mov_b32 exec_hi, 0")
    for w in range(4):
        k(f"ds_read_b128 v[{16+4*w}:{19+4*w}], v4 offset:{P_QR+512*w}")
    k(f"v_mov_b32 v9, s{S_TAG12}\ns_waitcnt lgkmcnt(2)")
    for q in range(4):
        k(f"v_add_f32 v{16+q}, v{16+q}, v{20+q}")
    k("s_waitcnt lgkmcnt(0)")
    for q in range(4):
        k(f"v_add_f32 v{24+q}, v{24+q}, v{28+q}")
    for q in range(4):
        k(f"v_add_f32 v{16+q}, v{16+q}, v{24+q}")
    k(f"v_bfi_b32 v16, s{S_M12}, v9, v16")
    k("buffer_store_dwordx4 v[16:19], v105, s[52:55], 0 offen sc1\ns_mov_b64 exec, -1")
    k(f"s_waitcnt vmcnt({opt.get('polla_left', 2) + 1})\ns_branch P_polla")
    k("P_nopub:")
    k(f"s_waitcnt vmcnt({opt.get('polla_left', 2)})")
    k("P_polla:")
    k.wp("WP2", "WP3")
    k("buffer_load_dwordx4 v[32:35], v104, s[52:55], 0 offen sc1\nbuffer_load_dwordx4 v[36:39], v104, s[52:55], 0 offen offset:1024 sc1")
    k.spin()
    k(f"s_waitcnt vmcnt(0)\nv_xor_b32 v9, s{S_TAG12}, v32\nv_bitop3_b32 v9, v9, v36, s{S_TAG12} bitop3:0xf6")
    k(f"v_and_b32 v9, s{S_M12}, v9\nv_cmp_ne_u32 vcc, 0, v9\ns_cbranch_vccnz P_polla")
    k.stamp(4)
    k("v_and_b32 v32, 0xfffff000, v32\nv_and_b32 v36, 0xfffff000, v36")
    for q in range(4):
        k(f"v_add_f32 v{32+q}, v{32+q}, v{36+q}")
    k("s_nop 0\nv_permlane32_swap_b32 v32, v34\ns_nop 0\nv_permlane32_swap_b32 v33, v35")
    k("v_add_f32 v32, v32, v34\nv_add_f32 v33, v33, v35\nv_cvt_pk_bf16_f32 v32, v32, v33")
    k("ds_write_b32 v97, v32\nds_read_b128 v[16:19], v98\nds_read_b128 v[20:23], v99")
    k("s_waitcnt lgkmcnt(1)")
    for T in range(4):
        k(f"v_mfma_f32_16x16x32_bf16 v[{32+4*T}:{35+4*T}], v[{64+4*T}:{67+4*T}], v[16:19], 0")
    k("s_waitcnt lgkmcnt(0)")
    for T in range(4):
        k(f"v_mfma_f32_16x16x32_bf16 v[{32+4*T}:{35+4*T}], v[{80+4*T}:{83+4*T}], v[20:23], v[{32+4*T}:{35+4*T}]")
    k("s_nop 4")
    for u in range(1, 4):
        for T in range(4):
            D = 32 + 4 * T
            k(f"v_add_f32_dpp v{16+T}, v{D+u}, v{D if u == 1 else 16+T} quad_perm:[{u},{u},{u},{u}] row_mask:0xf bank_mask:0xf")
    for T in range(4):
        k(f"v_cvt_pk_bf16_f32 v{16+T}, s{S_TAGF}, v{16+T}")
    k("s_mov_b32 exec_lo, 0x00110011\ns_mov_b32 exec_hi, 0x00110011")
    k("buffer_store_dwordx4 v[16:19], v106, s[52:55], 0 offen sc1\ns_mov_b64 exec, -1")
    k.stamp(5)

    k.srd(44, 16, NBYTES["wuv"])
    k.srd(48, 18, NBYTES["wo"])
    k(f"s_lshl_b32 s6, s67, 7\ns_lshl_b32 s7, s{S_W}, 2\ns_add_u32 s6, s6, s7\ns_lshl_b32 s6, s6, 13\ns_lshl_b32 s7, s66, 8\ns_add_u32 s6, s6, s7")
    k("v_and_b32 v9, 1, v2\nv_lshlrev_b32 v9, 19, v9\nv_lshrrev_b32 v10, 1, v2\nv_lshl_add_u32 v9, v10, 13, v9\nv_lshl_add_u32 v9, v3, 4, v9\nv_add_u32 v9, s6, v9")
    for t in range(8):
        k(f"s_mov_b32 s6, {(16*(t&3)+2*(t>>2))*8192}\nbuffer_load_dwordx4 v[{64+4*t}:{67+4*t}], v9, s[44:47], s6 offen {NT}")
    k(f"s_lshl_b32 s6, s66, 17\ns_lshl_b32 s7, s{S_W}, 8\ns_add_u32 s6, s6, s7")
    k("v_lshlrev_b32 v10, 13, v2\nv_lshl_add_u32 v10, v3, 4, v10\nv_add_u32 v10, s6, v10\nv_add_u32 v11, 0x1000, v10")
    k.wp("WP3", "WP_ret")
    for sg in range(4):
        k(f"s_add_u32 s6, s67, {sg}\ns_and_b32 s6, s6, 3\ns_lshl_b32 s6, s6, 15")
        for t in range(8):
            R = 96 + 32 * sg + 4 * t
            k(f"buffer_load_dwordx4 v[{R}:{R+3}], v{10 + (t>>2)}, s[48:51], s6 offen offset:{(t&3)*1024} {NT}")
    k(f"s_lshl_b32 s6, s66, 4\ns_add_u32 s6, s6, {WS_ML}\nv_lshlrev_b32 v5, 9, v0\nv_add_u32 v5, s6, v5")
    k(f"s_lshl_b32 s6, s66, 10\ns_lshl_b32 s7, s67, 8\ns_add_u32 s6, s6, s7\ns_lshl_b32 s7, s{S_W}, 6\ns_add_u32 s6, s6, s7\ns_add_u32 s6, s6, {WS_CP}")
    k("v_lshrrev_b32 v6, 2, v0\nv_lshlrev_b32 v6, 15, v6\nv_lshrrev_b32 v8, 5, v0\nv_lshlrev_b32 v8, 1, v8\nv_xor_b32 v8, v8, v7\nv_lshl_add_u32 v6, v8, 4, v6\nv_add_u32 v6, s6, v6")
    k(f"s_lshl_b32 s69, s{S_W}, 12\ns_add_u32 s69, s69, {P_G}")
    k("v_bfe_u32 v8, v0, 2, 2\nv_lshl_add_u32 v8, v2, 3, v8\nv_lshlrev_b32 v8, 6, v8\nv_lshl_add_u32 v8, v7, 3, v8\nv_and_b32 v9, 1, v2\nv_lshl_add_u32 v8, v9, 5, v8\nv_add_u32 v8, s69, v8\nv_xor_b32 v9, 32, v8")
    k(f"s_lshl_b32 s6, s{S_W}, 7\ns_add_u32 s6, s6, {P_W}\nv_lshl_add_u32 v12, v0, 1, s6\nv_lshl_add_u32 v13, v2, 4, s6")
    k(f"s_mul_i32 s6, s{S_W}, 272\ns_add_u32 s6, s6, {P_CX}\nv_lshl_add_u32 v14, v3, 4, s6")
    k(f"v_mul_u32_u24 v15, 272, v7\nv_lshl_add_u32 v15, v2, 4, v15\nv_add_u32 v15, {P_CX}, v15")
    for sg in range(4):
        k(f"s_add_u32 s6, s67, {sg}\ns_and_b32 s6, s6, 3\ns_lshl_b32 s6, s6, 6\nv_add_u32 v{224+sg}, s6, v15")
    k(f"s_lshl_b32 s6, s66, 2\ns_add_u32 s6, s6, s67\ns_lshl_b32 s6, s6, 11\ns_lshl_b32 s7, s{S_W}, 9\ns_add_u32 s6, s6, s7\ns_add_u32 s6, s6, {WS_OP}\nv_add_u32 v15, s6, v4")
    k.wp("WP4", "WP5")
    for b in range(5):
        k(f"s_waitcnt vmcnt({32-8*b})")
        k.transpose8(32 + 32 * b, 64 + 32 * b)
        if b == 2:
            k.wp("WP5", "WP_ret")
    k.stamp(6)
    k.wp("WP6", "WP7")
    k("P_pollml:")
    k("buffer_load_dwordx4 v[16:19], v5, s[52:55], 0 offen sc1")
    k.spin()
    k(f"s_waitcnt vmcnt(0)\nv_cmp_ne_u32 vcc, s{S_TAG32}, v18\ns_cbranch_vccnz P_pollml")
    k.stamp(7)
    def cp_gather():
        k("s_mov_b32 m0, s69\ns_mov_b32 s6, 0")
        for n in range(4):
            k("buffer_load_dwordx4 v6, s[52:55], s6 offen sc1 lds")
            if n < 3:
                k("s_add_u32 m0, m0, 0x400\ns_add_u32 s6, s6, 0x80000")
    cp_gather()
    k("v_mov_b32 v20, v16")
    k.wave_reduce("v_max_f32", 20, 21)
    k("v_sub_f32 v16, v16, v20\nv_exp_f32 v16, v16\ns_nop 0\nv_cvt_pk_bf16_f32 v16, 0, v16\nds_write_b16_d16_hi v12, v16\nv_mul_f32 v17, v17, v16")
    k("ds_read_b128 v[24:27], v13\nds_read_b128 v[28:31], v13 offset:64")
    k.wave_reduce("v_add_f32", 17, 21)
    k("v_rcp_f32 v17, v17")
    k("P_gwait:\ns_waitcnt vmcnt(0)")
    k.stamp(8)
    for Tt in range(2):
        for s in range(2):
            for hf in range(2):
                R = 192 + 8 * Tt + 4 * s + 2 * hf
                k(f"ds_read_b64_tr_b16 v[{R}:{R+1}], v{8+Tt} offset:{2048*s+256*hf}")
    k("v_mov_b32 v21, 0")
    for i in range(4):
        R = 192 + 4 * i
        k(f"s_waitcnt lgkmcnt({6-2*i})")
        for q in range(4):
            k(f"v_bitop3_b32 v21, v21, v{R+q}, s{S_TB} bitop3:0xf6\nv_or_b32 v{R+q}, s{S_LSB}, v{R+q}")
        Tt, s = i >> 1, i & 1
        k("s_nop 1")
        k(f"v_mfma_f32_16x16x32_bf16 v[{208+4*Tt}:{211+4*Tt}], v[{R}:{R+3}], v[{24+4*s}:{27+4*s}], " + ("0" if s == 0 else f"v[{208+4*Tt}:{211+4*Tt}]"))
    k(f"v_and_b32 v21, s{S_LSB}, v21\nv_cmp_ne_u32 vcc, 0, v21\ns_cbranch_vccz P_gok")
    cp_gather()
    k.spin()
    k("s_branch P_gwait\nP_gok:")
    k.wp("WP7", "WP8")
    k("v_cvt_pk_bf16_f32 v216, v208, v209\nv_cvt_pk_bf16_f32 v217, v210, v211\ns_nop 2\nv_cvt_pk_bf16_f32 v218, v212, v213\nv_cvt_pk_bf16_f32 v219, v214, v215\ns_nop 1")
    for T in range(8):
        D = [192, 196, 200, 204, 208, 212, 228, 232][T]
        k(f"v_mfma_f32_16x16x32_bf16 v[{D}:{D+3}], v[216:219], v[{32+4*T}:{35+4*T}], 0")
    k("s_mov_b64 exec, 0xffff\ns_nop 1\nv_cvt_pk_bf16_f32 v220, v192, v196\ns_nop 0\nv_cvt_pk_bf16_f32 v221, v200, v204\ns_nop 0\nv_cvt_pk_bf16_f32 v222, v208, v212\ns_nop 0\nv_cvt_pk_bf16_f32 v223, v228, v232")
    k("ds_write_b128 v14, v[220:223]\ns_mov_b64 exec, -1\ns_waitcnt lgkmcnt(0)\ns_barrier")
    for sg in range(4):
        k(f"ds_read_b128 v[{236+4*sg}:{239+4*sg}], v{224+sg}")
    k(f"s_mov_b32 s20, 0xffff0000\ns_mov_b32 s21, 0\nv_mov_b32 v21, s{S_TAG12}")
    pend = []
    for T in range(8):
        D = 192 + 4 * T
        for sg in range(4):
            if T == 0:
                k(f"s_waitcnt lgkmcnt({3-sg})")
            k(f"v_mfma_f32_16x16x32_bf16 v[{D}:{D+3}], v[{236+4*sg}:{239+4*sg}], v[{64+32*sg+4*T}:{67+32*sg+4*T}], " + ("0" if sg == 0 else f"v[{D}:{D+3}]"))
            if T >= 3 and sg < 3:
                E = 192 + 4 * (T - 3)
                k(f"v_add_f32 v{E}, v{E}, v{E+1+sg}")
        if T == 3:
            k.wp("WP8", "WP_ret")
    for T in range(5, 8):
        E = 192 + 4 * T
        if T == 7:
            k("s_nop 1")
        for q in range(3):
            k(f"v_add_f32 v{E}, v{E}, v{E+1+q}")
    for r in range(4):
        k(f"v_cndmask_b32 v{24+r}, v{192+4*r}, v{208+4*r}, s[20:21]")
    for r in range(4):
        k(f"v_mul_f32 v{24+r}, v{24+r}, v17")
    k(f"v_bfi_b32 v24, s{S_M12}, v21, v24\ns_mov_b32 exec_hi, 0")
    k("buffer_store_dwordx4 v[24:27], v15, s[52:55], 0 offen sc1")
    k.stamp(9)
    k.dump_stamps()
    k("s_endpgm")

    k(".p2align 6\nA_main:")
    k.wp("WA0", "WA1")
    k("s_waitcnt lgkmcnt(0)")
    k.tags()
    k.srd(52, 34, WS_USED)
    k(f"v_mul_u32_u24 v5, {ROW}, v3\nv_lshl_add_u32 v5, v2, 4, v5\nv_add_u32 v6, {L_Q}, v5\nv_add_u32 v5, s69, v5")
    k(f"v_lshrrev_b32 v7, 2, v0\nv_mul_u32_u24 v7, {ROW}, v7\nv_and_b32 v8, 3, v0\nv_lshl_add_u32 v7, v8, 3, v7\ns_lshl_b32 s6, s{S_W}, 8\nv_add_u32 v7, s6, v7\nv_add_u32 v8, {64*ROW}, v7")
    k(f"s_lshl_b32 s6, s67, 15\ns_lshl_b32 s7, s{S_W}, 13\ns_add_u32 s6, s6, s7\ns_add_u32 s6, s6, {WS_QA}\nv_add_u32 v9, s6, v4\nv_add_u32 v10, 0x1000, v9")
    k(f"s_mul_i32 s6, s{S_W}, {4*ROW}\ns_add_u32 s6, s6, {L_Q}\nv_lshl_add_u32 v11, v0, 3, s6")
    k(f"s_lshl_b32 s6, s{S_W}, 10\ns_add_u32 s6, s6, {L_P}\nv_add_u32 v12, s6, v4\nv_add_u32 v13, {L_P}, v4")
    k(f"s_lshl_b32 s6, s{S_W}, 2\ns_add_u32 s6, s6, {L_M}\nv_lshl_add_u32 v14, v3, 4, s6\nv_lshlrev_b32 v15, 4, v3\nv_add_u32 v15, {L_M}, v15")
    k(f"s_lshl_b32 s6, s66, 9\ns_lshl_b32 s7, s67, 8\ns_add_u32 s6, s6, s7\ns_add_u32 s6, s6, {WS_ML}\nv_add_u32 v16, s6, v4")
    k(f"s_lshl_b32 s6, s66, 15\ns_lshl_b32 s7, s67, 14\ns_add_u32 s6, s6, s7\ns_lshl_b32 s7, s{S_W}, 8\ns_add_u32 s6, s6, s7\ns_add_u32 s6, s6, {WS_CP}")
    k("v_lshlrev_b32 v17, 12, v2\nv_lshl_add_u32 v17, v3, 4, v17\nv_add_u32 v17, s6, v17")
    k("v_mov_b32 v20, 0x3f803f80\nv_mov_b32 v21, v20\nv_mov_b32 v22, v20\nv_mov_b32 v23, v20")
    k(f"v_mov_b32 v18, s{S_TB}")
    k.walk(["WA8", "WA9", "WA10", "WA_ret2"], "WA_ret2")
    def key_frags(tau):
        for s in range(16):
            R = 64 * tau + 4 * s
            k(f"ds_read_b128 a[{R}:{R+3}], v5 offset:{tau*16*ROW + 64*s}")
    k("s_waitcnt vmcnt(16)")
    key_frags(0)
    k("s_waitcnt vmcnt(0)")
    k.stamp(3)
    k("s_barrier")
    k.wp("WA1", "WA_ret")
    def qa_loads():
        for n in range(8):
            k(f"buffer_load_dwordx4 v[{32+4*n}:{35+4*n}], v{9+(n>>2)}, s[52:55], 0 offen offset:{(n&3)*1024} sc1")
    qa_loads()
    key_frags(1)
    for kap in range(4):
        for T in range(8):
            for hf in range(2):
                R = 128 + 32 * kap + 4 * T + 2 * hf
                k(f"ds_read_b64_tr_b16 a[{R}:{R+1}], v{7+(kap>>1)} offset:{(kap&1)*32*ROW + hf*16*ROW + 32*T}")
    k.wp("WA2", "WA3")
    k("A_pollb:\nv_mov_b32 v19, 0")
    for n in range(8):
        R = 32 + 4 * n
        k(f"s_waitcnt vmcnt({7-n})")
        k(f"v_perm_b32 v{64+2*n}, v{R+1}, v{R}, s{S_SELHI}\nv_perm_b32 v{65+2*n}, v{R+3}, v{R+2}, s{S_SELHI}")
        k(f"ds_write_b64 v11, v[{64+2*n}:{65+2*n}] offset:{(n>>1)*ROW + (n&1)*512}")
        k(f"v_bitop3_b32 v19, v19, v{R}, s{S_TAG16} bitop3:0xf6\nv_bitop3_b32 v19, v19, v{R+3}, s{S_TAG16} bitop3:0xf6")
    k("v_and_b32 v19, 0xffff, v19\nv_cmp_ne_u32 vcc, 0, v19\ns_cbranch_vccz A_gotq")
    qa_loads()
    k.spin()
    k("s_branch A_pollb\nA_gotq:")
    k("s_waitcnt lgkmcnt(0)\ns_barrier")
    k.stamp(4)
    for s in range(16):
        k(f"ds_read_b128 v[{64+4*s}:{67+4*s}], v6 offset:{64*s}")
    k(f"s_mul_i32 s20, s{S_XCD}, 11\ns_add_u32 s20, s20, s{S_SLOT}\ns_cmp_lt_u32 s{S_SLOT}, 11\ns_cselect_b32 s20, s20, 99")
    k.wp("WA3", "WA_ret")
    SC = hex(f2u(128 ** -0.5))
    LOG2E = hex(f2u(math.log2(math.e)))
    k(f"s_mov_b32 s21, {LOG2E}")
    def rnd(v):
        return [f"v_cvt_pk_bf16_f32 v{v}, 0, v{v}", f"v_mul_f32 v{v}, {SC}, v{v}", f"v_cvt_pk_bf16_f32 v{v}, 0, v{v}"]
    for s in range(16):
        k(f"s_waitcnt lgkmcnt({15-s})")
        k(f"v_mfma_f32_16x16x32_bf16 v[24:27], a[{4*s}:{4*s+3}], v[{64+4*s}:{67+4*s}], " + ("0" if s == 0 else "v[24:27]"))
    fill = sum([rnd(24 + r) for r in range(4)], []) + ["v_max3_f32 v32, v24, v25, v26", "v_max_f32 v32, v32, v27"]
    for s in range(16):
        k(f"v_mfma_f32_16x16x32_bf16 v[28:31], a[{64+4*s}:{64+4*s+3}], v[{64+4*s}:{67+4*s}], " + ("0" if s == 0 else "v[28:31]"))
        if s >= 8:
            for _ in range(2):
                if fill:
                    k(fill.pop(0))
    assert not fill
    k("s_nop 7")
    for r in range(4):
        for x in rnd(28 + r):
            k(x)
    k("v_max3_f32 v32, v32, v28, v29\nv_max3_f32 v32, v32, v30, v31")
    for sw in ("v_permlane16_swap_b32", "v_permlane32_swap_b32"):
        k(f"v_mov_b32 v33, v32\ns_nop 1\n{sw} v33, v32\nv_max_f32 v32, v32, v33")
    k("v_mul_f32 v32, s21, v32\nv_ceil_f32 v32, v32")
    k.wp("WA4", "WA5")
    for r in range(8):
        k(f"v_fma_f32 v{24+r}, v{24+r}, s21, -v32")
    k("ds_write_b32 v14, v32")
    for r in range(8):
        k(f"v_exp_f32 v{24+r}, v{24+r}")
    k("s_nop 0")
    for q in range(4):
        k(f"v_cvt_pk_bf16_f32 v{36+q}, v{24+2*q}, v{25+2*q}")
    k("ds_write_b128 v12, v[36:39]\ns_waitcnt lgkmcnt(0)\ns_barrier")
    k.stamp(5)
    k("ds_read_b128 v[28:31], v15")
    for kap in range(4):
        k(f"ds_read_b128 v[{40+4*kap}:{43+4*kap}], v13 offset:{1024*kap}")
    k("s_waitcnt lgkmcnt(4)\nv_max3_f32 v24, v28, v29, v30\nv_max_f32 v24, v24, v31")
    for kap in range(4):
        k(f"v_sub_f32 v{28+kap}, v24, v{28+kap}\nv_min_f32 v{28+kap}, 0x437f0000, v{28+kap}\nv_cvt_u32_f32 v{28+kap}, v{28+kap}\nv_mul_u32_u24 v{28+kap}, 0x00800080, v{28+kap}")
        k(f"s_waitcnt lgkmcnt({3-kap})")
        for q in range(4):
            k(f"v_pk_sub_u16 v{40+4*kap+q}, v{40+4*kap+q}, v{28+kap} clamp")
        k("s_nop 1")
        k(f"v_mfma_f32_16x16x32_bf16 v[32:35], v[20:23], v[{40+4*kap}:{43+4*kap}], " + ("0" if kap == 0 else "v[32:35]"))
        k(f"v_mfma_f32_16x16x32_bf16 v[64:67], v[{40+4*kap}:{43+4*kap}], a[{128+32*kap}:{131+32*kap}], " + ("0" if kap == 0 else "v[64:67]"))
    k.wp("WA5", "WA_ret")
    fill = []
    for T in range(1, 8):
        D = 64 + 4 * T
        for kap in range(4):
            k(f"v_mfma_f32_16x16x32_bf16 v[{D}:{D+3}], v[{40+4*kap}:{43+4*kap}], a[{128+32*kap+4*T}:{131+32*kap+4*T}], " + ("0" if kap == 0 else f"v[{D}:{D+3}]"))
            for _ in range(2):
                if fill:
                    k(fill.pop(0))
        if T == 2:
            k(f"s_cmp_lg_u32 s{S_W}, 0\ns_cbranch_scc1 A_noml")
            k(f"v_mov_b32 v25, v32\nv_mov_b32 v26, s{S_TAG32}\nv_mov_b32 v27, s{S_TAG32}\ns_mov_b64 exec, 0xffff")
            k("buffer_store_dwordx4 v[24:27], v16, s[52:55], 0 offen sc1\ns_mov_b64 exec, -1\nA_noml:")
        if T in (3, 5):
            q = (T - 3) // 2
            for r in range(4):
                fill += [f"v_perm_b32 v{96+4*r+q}, v{64+8*q+4+r}, v{64+8*q+r}, s{S_SELHI}", f"v_bfi_b32 v{96+4*r+q}, s{S_LSB}, v18, v{96+4*r+q}"]
    assert not fill
    for r in range(4):
        k(f"v_perm_b32 v{96+4*r+2}, v{64+16+4+r}, v{64+16+r}, s{S_SELHI}\nv_bfi_b32 v{96+4*r+2}, s{S_LSB}, v18, v{96+4*r+2}")
    for r in range(4):
        k(f"v_perm_b32 v{96+4*r+3}, v{64+24+4+r}, v{64+24+r}, s{S_SELHI}\nv_bfi_b32 v{96+4*r+3}, s{S_LSB}, v18, v{96+4*r+3}")
        k(f"buffer_store_dwordx4 v[{96+4*r}:{99+4*r}], v17, s[52:55], 0 offen offset:{1024*r} sc1")
    k.stamp(6)
    k.wp("WA6", "WA7")
    k("s_cmp_lt_u32 s20, 86\ns_cbranch_scc1 M_main")
    k(f"s_cmp_lt_u32 s{S_SLOT}, 12\ns_cbranch_scc1 A_done\ns_cmp_lg_u32 s{S_W}, 0\ns_cbranch_scc1 A_done")

    k(f"s_lshl_b32 s20, s{S_XCD}, 2\ns_add_u32 s20, s20, s{S_SLOT}\ns_sub_u32 s20, s20, 12")
    k("s_lshr_b32 s6, s20, 3\ns_lshl_b32 s6, s6, 7\ns_and_b32 s7, s20, 3\ns_lshl_b32 s7, s7, 5\ns_add_u32 s6, s6, s7\ns_and_b32 s7, s20, 4\ns_add_u32 s6, s6, s7")
    k("v_and_b32 v5, 3, v0\nv_lshl_add_u32 v6, v5, 3, v2\nv_add_u32 v6, s6, v6\nv_lshlrev_b32 v6, 1, v6")
    k("v_mov_b32 v7, 0\nv_mov_b32 v8, 0\nglobal_load_short_d16_hi v7, v6, s[8:9]\nglobal_load_short_d16_hi v8, v6, s[28:29]")
    k("v_lshrrev_b32 v9, 2, v0\nv_min_u32 v10, 5, v9\nv_lshlrev_b32 v9, 11, v9\nv_lshlrev_b32 v10, 11, v10\nv_lshl_add_u32 v9, v5, 4, v9\nv_lshl_add_u32 v10, v5, 4, v10")
    k(f"s_lshl_b32 s6, s20, 6\ns_add_u32 s7, s6, {WS_OP}\nv_add_u32 v11, s7, v9\ns_add_u32 s7, s6, {WS_MP}\nv_add_u32 v9, s7, v9\nv_add_u32 v10, s7, v10")
    reduce_rows(k, 32, 6, (9, 32768), 6, 12, "R_pollm")
    k.stamp(7)
    k.wp("WA7", "WA_ret")
    k("v_cvt_pk_bf16_f32 v12, 0, v12\nv_add_f32 v12, v12, v8\nv_cvt_pk_bf16_f32 v12, 0, v12")
    k(f"v_mul_f32 v13, {hex(f2u(-math.log2(math.e)))}, v12\nv_exp_f32 v13, v13\ns_nop 0\nv_add_f32 v13, 1.0, v13\nv_rcp_f32 v13, v13\ns_nop 0\nv_mul_f32 v12, v12, v13\nv_cvt_pk_bf16_f32 v12, 0, v12")
    reduce_rows(k, 32, 8, (11, 32768), 0, 13, "R_pollo")
    k.stamp(8)
    k("v_cvt_pk_bf16_f32 v13, 0, v13\nv_mul_f32 v13, v13, v12\nv_cvt_pk_bf16_f32 v13, 0, v13\nv_add_f32 v13, v13, v7\nv_cvt_pk_bf16_f32 v13, 0, v13")
    k("s_mov_b32 exec_lo, 0x000f000f\ns_mov_b32 exec_hi, 0x000f000f\nglobal_store_short_d16_hi v6, v13, s[30:31]")
    k("s_cmp_lg_u32 s20, 0\ns_cbranch_scc1 A_done")
    k(f"s_mov_b64 exec, 1\nv_mov_b32 v5, 0\nv_mov_b32 v7, s{S_TAG32}\nglobal_store_dword v5, v7, s[34:35]")
    k("A_done:")
    if opt.get("diag_pad"):
        if "diag_xcd" in opt:
            k(f"s_cmp_lg_u32 s{S_XCD}, {opt['diag_xcd']}\ns_cbranch_scc1 L_end")
        k(f"s_add_u32 s70, s70, {opt['diag_pad']*100}\nL_pad:\ns_memrealtime s[72:73]\ns_waitcnt lgkmcnt(0)\ns_sub_u32 s72, s72, s70\ns_cmp_lt_i32 s72, 0\ns_cbranch_scc1 L_pad")
    k.stamp(9)
    k.dump_stamps()
    k("s_endpgm")

    k("M_main:")
    k.wp("WA8", "WA_ret2")
    k.srd(44, 22, NBYTES["w1"])
    k.srd(48, 26, NBYTES["w2"])
    k("global_load_dwordx4 v[24:27], v4, s[8:9]")
    k(f"s_mul_i32 s6, s{S_W}, {128*2752}\ns_lshl_b32 s7, s20, 5\ns_add_u32 s6, s6, s7")
    k(f"v_lshrrev_b32 v5, 1, v0\nv_mul_u32_u24 v6, {4*2752}, v5\nv_and_b32 v7, 1, v0\nv_lshl_add_u32 v6, v7, 4, v6\nv_add_u32 v6, s6, v6")
    for n in range(4):
        k(f"s_movk_i32 s6, {n*2752}\nbuffer_load_dwordx4 v[{128+4*n}:{131+4*n}], v6, s[44:47], s6 offen {NT}")
    k("v_lshl_add_u32 v8, v2, 3, s7\nglobal_load_dwordx2 v[28:29], v8, s[24:25]")
    k(f"s_lshl_b32 s6, s20, 14\ns_lshl_b32 s7, s{S_W}, 8\ns_add_u32 s6, s6, s7\nv_lshlrev_b32 v8, 12, v2\nv_lshl_add_u32 v8, v3, 4, v8\nv_add_u32 v8, s6, v8")
    for s in range(4):
        k(f"buffer_load_dwordx4 v[{144+4*s}:{147+4*s}], v8, s[48:51], 0 offen offset:{1024*s} {NT}")
    k.delta_masks(12, 3, 9)
    k("s_waitcnt vmcnt(9)")
    k.unpack8(32, 24)
    k.ln_stats(32, 10, 11, 9, 16)
    for i in range(8):
        k.ln_apply(32 + i, 10, 11, False)
    k.wp("WA9", "WA_ret2")
    k.ln_stats(32, 10, 11, 9, 16)
    for i in range(8):
        k.ln_apply(32 + i, 10, 11, False)
    k(f"v_lshlrev_b32 v9, 5, v0\nv_add_u32 v9, {L_Y}, v9\nds_write_b128 v9, v[32:35]\nds_write_b128 v9, v[36:39] offset:16")
    k(f"s_lshl_b32 s6, s{S_W}, 9\ns_add_u32 s6, s6, {L_Y}\nv_lshl_add_u32 v9, v5, 4, s6\nds_read_b128 v[40:43], v9")
    k("s_waitcnt lgkmcnt(0)")
    for n in range(4):
        k(f"s_waitcnt vmcnt({8-n})")
        k.unpack8(48, 128 + 4 * n)
        for e in range(8):
            k(f"v_mul_f32 v{32+e}, v{48+e}, v40" if n == 0 else f"v_fmac_f32 v{32+e}, v{48+e}, v{40+n}")
    k.wp("WA10", "WA_ret2")
    k("s_nop 1")
    for e in range(4):
        k(f"v_permlane32_swap_b32 v{32+e}, v{36+e}")
    for e in range(4):
        k(f"v_add_f32 v{32+e}, v{32+e}, v{36+e}")
    k("s_nop 1\nv_permlane16_swap_b32 v32, v34\nv_permlane16_swap_b32 v33, v35\nv_add_f32 v32, v32, v34\nv_add_f32 v33, v33, v35")
    for m in ("row_ror:2", "row_ror:4", "row_ror:8"):
        k(f"s_nop 1\nv_add_f32_dpp v32, v32, v32 {m} row_mask:0xf bank_mask:0xf\nv_add_f32_dpp v33, v33, v33 {m} row_mask:0xf bank_mask:0xf")
    k(f"s_lshl_b32 s6, s{S_W}, 6\ns_add_u32 s6, s6, {L_H}\nv_lshlrev_b32 v9, 5, v7\nv_lshl_add_u32 v9, v2, 3, v9\nv_add_u32 v9, s6, v9\nds_write_b64 v9, v[32:33]")
    k(f"v_lshlrev_b32 v9, 4, v2\nv_add_u32 v9, {L_H}, v9\ns_waitcnt lgkmcnt(0)\ns_barrier")
    for w in range(4):
        k(f"ds_read_b128 v[{32+4*w}:{35+4*w}], v9 offset:{64*w}")
    k("s_waitcnt vmcnt(4)\nv_lshlrev_b32 v48, 16, v28\nv_and_b32 v49, 0xffff0000, v28\nv_lshlrev_b32 v50, 16, v29\nv_and_b32 v51, 0xffff0000, v29\ns_waitcnt lgkmcnt(0)")
    C1 = -2.0 * math.sqrt(2.0 / math.pi) * math.log2(math.e)
    k(f"s_mov_b32 s6, {hex(f2u(C1*0.044715))}\nv_mov_b32 v52, {hex(f2u(C1))}")
    for s in range(4):
        x = 32 + s
        k(f"v_add_f32 v{x}, v{x}, v{36+s}\nv_add_f32 v{40+s}, v{40+s}, v{44+s}\nv_add_f32 v{x}, v{x}, v{40+s}")
        k(f"v_cvt_pk_bf16_f32 v{x}, 0, v{x}\nv_add_f32 v{x}, v{x}, v{48+s}\nv_cvt_pk_bf16_f32 v{x}, 0, v{x}")
        k(f"v_mul_f32 v53, v{x}, v{x}\nv_fma_f32 v53, v53, s6, v52\nv_mul_f32 v53, v53, v{x}\nv_exp_f32 v53, v53\ns_nop 0\nv_add_f32 v53, 1.0, v53\nv_rcp_f32 v53, v53\ns_nop 0")
        k(f"v_mul_f32 v{x}, v{x}, v53\nv_cvt_pk_bf16_f32 v{x}, v{x}, v{x}")
    for s in range(4):
        A = 40 + 4 * (s & 1)
        for r in range(4):
            k(f"v_and_b32 v{A+r}, v{32+s}, v{12+r}")
        k(f"s_waitcnt vmcnt({3-s})\ns_nop 0")
        k(f"v_mfma_f32_16x16x32_bf16 v[56:59], v[{A}:{A+3}], v[{144+4*s}:{147+4*s}], " + ("0" if s == 0 else "v[56:59]"))
    k(f"s_lshl_b32 s6, s20, 11\ns_lshl_b32 s7, s{S_W}, 9\ns_add_u32 s6, s6, s7\ns_add_u32 s6, s6, {WS_MP}\nv_add_u32 v9, s6, v4\nv_mov_b32 v10, s{S_TAG12}\ns_nop 3")
    k(f"v_bfi_b32 v56, s{S_M12}, v10, v56\ns_mov_b32 exec_hi, 0")
    k("buffer_store_dwordx4 v[56:59], v9, s[52:55], 0 offen sc1")
    k.stamp(9)
    k.dump_stamps()
    k("L_end:\ns_endpgm")
    return k.text()


HEADER = open("cdna_kernels/" + NAME + ".s.ref").read().split("; Override launch")[0]

def emit(path, opt):
    body = build(opt)
    open(path, "w").write(wrap(body, 256, 256, LDS_BYTES, 512, 256, 102, HEADER))

if __name__ == "__main__":
    opt = {}
    for a in sys.argv[2:]:
        kk, v = a.split("=")
        opt[kk] = int(v)
    emit(sys.argv[1], opt)
```

```python
import sys, struct, math
from asmlib import *

def f2u(x):
    return struct.unpack("<I", struct.pack("<f", x))[0]

WS_QP = 0x010000
WS_QA = 0x020000
WS_ML = 0x030000
WS_OP = 0x040000
WS_HP = 0x050000
WS_CX = 0x0C0000
WS_FAR = 0x100000
WS_MP = 0x080000
WS_CP = 0x200000
WS_USED = 0x400000
STAMP_OFF = 200 << 20

ROW = 1056
L_TILE = 0
L_Q = 128 * ROW
L_P = L_Q + 16 * ROW
L_M = L_P + 4096
LDS_BYTES = L_M + 256
P_QR = 0
P_QB = 2048
P_W = 4096
P_G = 8192
P_U = P_G + 16384
P_O = P_U + 32 * ROW

S_W, S_XCD, S_SLOT = 3, 4, 5
S_TAG32, S_TAG12, S_TAGF, S_TAG16, S_TB, S_LSB, S_M12, S_SELHI, S_SPIN = 56, 57, 58, 59, 60, 61, 62, 63, 64
S_FAR = 65
SPIN_MAX = 1 << 20


class K(Asm):
    def __init__(self, opt):
        super().__init__()
        self.opt = opt
        self.nlab = 0
        self.stamps = opt.get("stamps", False)

    def lab(self, p="L"):
        self.nlab += 1
        return f"{p}_{self.nlab}"

    def stamp(self, i):
        if self.stamps:
            self(f"s_memrealtime s[{70+2*i}:{71+2*i}]")

    def dump_stamps(self):
        if not self.stamps:
            return
        self("s_mov_b64 exec, -1\ns_waitcnt lgkmcnt(0)\nv_mov_b32 v250, 0")
        for i in range(15):
            self(f"v_writelane_b32 v250, s{70+2*i}, {i}")
        self(f"v_writelane_b32 v250, s{S_SPIN}, 15")
        self(f"s_lshl_b32 s6, s2, 2\ns_add_u32 s6, s6, s{S_W}\ns_lshl_b32 s6, s6, 6\ns_add_u32 s6, s6, {STAMP_OFF}")
        self("v_mbcnt_lo_u32_b32 v251, -1, 0\nv_lshlrev_b32 v251, 2, v251\nv_add_u32 v251, s6, v251")
        self("s_mov_b64 exec, 0xffff\nglobal_store_dword v251, v250, s[34:35]")

    def srd(self, q, ptr, nbytes):
        self(f"s_mov_b32 s{q}, s{ptr}\ns_mov_b32 s{q+1}, s{ptr+1}\ns_mov_b32 s{q+2}, {nbytes}\ns_mov_b32 s{q+3}, 0x20000")

    def spin(self):
        self(f"s_add_u32 s{S_SPIN}, s{S_SPIN}, 1\ns_cmp_gt_u32 s{S_SPIN}, {SPIN_MAX}\ns_cbranch_scc1 L_end")

    def unpack8(self, dst, src):
        for q in range(4):
            self(f"v_lshlrev_b32 v{dst+2*q}, 16, v{src+q}\nv_and_b32 v{dst+2*q+1}, 0xffff0000, v{src+q}")

    def wave_reduce(self, op, x, t):
        for m in ("quad_perm:[1,0,3,2]", "quad_perm:[2,3,0,1]", "row_ror:4", "row_ror:8"):
            self(f"s_nop 1\n{op}_dpp v{x}, v{x}, v{x} {m} row_mask:0xf bank_mask:0xf")
        for sw in ("v_permlane16_swap_b32", "v_permlane32_swap_b32"):
            self(f"v_mov_b32 v{t}, v{x}\ns_nop 1\n{sw} v{t}, v{x}\n{op} v{x}, v{x}, v{t}")

    def ln_stats(self, f, mb, r, t0, t1):
        self(f"v_add_f32 v{mb}, v{f}, v{f+1}\nv_add_f32 v{t0}, v{f+2}, v{f+3}\nv_add_f32 v{t1}, v{f+4}, v{f+5}\nv_add_f32 v{r}, v{f+6}, v{f+7}")
        self(f"v_add_f32 v{mb}, v{mb}, v{t0}\nv_add_f32 v{t1}, v{t1}, v{r}\nv_add_f32 v{mb}, v{mb}, v{t1}")
        self.wave_reduce("v_add_f32", mb, t0)
        self(f"v_mul_f32 v{mb}, {hex(f2u(1/512))}, v{mb}")
        for i in range(8):
            self(f"v_sub_f32 v{t0}, v{f+i}, v{mb}")
            self(f"v_mul_f32 v{r}, v{t0}, v{t0}" if i == 0 else f"v_fmac_f32 v{r}, v{t0}, v{t0}")
        self.wave_reduce("v_add_f32", r, t0)
        self(f"v_mul_f32 v{r}, {hex(f2u(1/512))}, v{r}\nv_cvt_pk_bf16_f32 v{mb}, 0, v{mb}\nv_cvt_pk_bf16_f32 v{r}, 0, v{r}")
        self(f"v_add_f32 v{r}, {hex(f2u(1e-5))}, v{r}\nv_cvt_pk_bf16_f32 v{r}, 0, v{r}\nv_sqrt_f32 v{r}, v{r}\ns_nop 0")
        self(f"v_cvt_pk_bf16_f32 v{r}, 0, v{r}\nv_rcp_f32 v{r}, v{r}\ns_nop 0")

    def ln_apply(self, v, mb, r, dup):
        self(f"v_sub_f32 v{v}, v{v}, v{mb}\nv_cvt_pk_bf16_f32 v{v}, 0, v{v}\nv_mul_f32 v{v}, v{v}, v{r}")
        self(f"v_cvt_pk_bf16_f32 v{v}, v{v}, v{v}" if dup else f"v_cvt_pk_bf16_f32 v{v}, 0, v{v}")

    def delta_masks(self, m, vj, t):
        self(f"v_and_b32 v{t}, 1, v{vj}\nv_cmp_eq_u32 vcc, 1, v{t}\nv_mov_b32 v{t}, 0xffff\nv_mov_b32 v{m}, 0xffff0000\nv_cndmask_b32 v{t}, v{t}, v{m}, vcc")
        self(f"v_lshrrev_b32 v{m+3}, 1, v{vj}")
        for r in range(4):
            self(f"v_cmp_eq_u32 vcc, {r}, v{m+3}\ns_nop 1\nv_cndmask_b32 v{m+r}, 0, v{t}, vcc")

    def tags(self):
        self(f"s_add_u32 s{S_TAG32}, s{S_TAG32}, 1\ns_and_b32 s{S_TAG12}, s{S_TAG32}, 0xfff")
        self(f"s_and_b32 s{S_TAG16}, s{S_TAG32}, 0x1fff\ns_or_b32 s{S_TAG16}, s{S_TAG16}, 0x4000\ns_lshl_b32 s{S_TAGF}, s{S_TAG16}, 16")
        self(f"s_mov_b32 s{S_LSB}, 0x00010001\ns_bitcmp1_b32 s{S_TAG32}, 0\ns_cselect_b32 s{S_TB}, s{S_LSB}, 0")
        self(f"s_movk_i32 s{S_M12}, 0xfff\ns_mov_b32 s{S_SELHI}, 0x07060302")

    def far_select(self, cnt):
        self(f"s_add_u32 s{cnt}, s{cnt}, 1\ns_and_b32 s6, s{cnt}, 1\ns_cmp_gt_u32 s{cnt}, 16\ns_cselect_b32 s6, s6, 0\ns_lshl_b32 s{S_FAR}, s6, 20")

    def wp(self, name, nxt):
        if self.opt.get("walk", True):
            self(f"{name}:\ns_cbranch_execz {nxt}")

    def walk(self, starts, ret):
        if not self.opt.get("walk", True):
            return
        self("s_mov_b64 exec, 0")
        for w in range(3):
            self(f"s_cmp_eq_u32 s{S_W}, {w}\ns_cbranch_scc1 {starts[w]}")
        self(f"s_branch {starts[3]}\n{ret}:\ns_mov_b64 exec, -1")


def reduce_rows(k, base, n, vaddr_soff, nvalid_last, dst, lab):
    vaddr, stride = vaddr_soff
    R = base
    k(f"{lab}:")
    for i in range(n):
        va = vaddr + (1 if (nvalid_last and i == n - 1) else 0)
        k(f"s_mov_b32 s6, {i*stride}\nbuffer_load_dwordx4 v[{R+4*i}:{R+4*i+3}], v{va}, s[52:55], s6 offen sc1")
    k.spin()
    t = R + 4 * n
    k(f"v_mov_b32 v{t}, 0")
    for i in range(n):
        k(f"s_waitcnt vmcnt({n-1-i})\nv_bitop3_b32 v{t}, v{t}, v{R+4*i}, s{S_TAG12} bitop3:0xf6")
    k(f"v_and_b32 v{t}, s{S_M12}, v{t}\nv_cmp_ne_u32 vcc, 0, v{t}\ns_cbranch_vccnz {lab}")
    for i in range(n):
        k(f"v_and_b32 v{R+4*i}, 0xfffff000, v{R+4*i}")
    if nvalid_last:
        k(f"s_mov_b64 exec, {hex((1 << (4*nvalid_last)) - 1)}")
        for q in range(4):
            k(f"v_add_f32 v{R+q}, v{R+q}, v{R+4*(n-1)+q}")
        k("s_mov_b64 exec, -1")
        n -= 1
    live = list(range(n))
    while len(live) > 1:
        nxt = []
        for a in range(0, len(live) - 1, 2):
            for q in range(4):
                k(f"v_add_f32 v{R+4*live[a]+q}, v{R+4*live[a]+q}, v{R+4*live[a+1]+q}")
            nxt.append(live[a])
        if len(live) & 1:
            nxt.append(live[-1])
        live = nxt
    k(f"s_nop 1\nv_permlane32_swap_b32 v{R}, v{R+2}\nv_permlane32_swap_b32 v{R+1}, v{R+3}")
    k(f"v_add_f32 v{R}, v{R}, v{R+2}\nv_add_f32 v{R+1}, v{R+1}, v{R+3}\ns_nop 1\nv_permlane16_swap_b32 v{R}, v{R+1}")
    k(f"v_add_f32 v{dst}, v{R}, v{R+1}")
    for m in ("row_ror:4", "row_ror:8"):
        k(f"s_nop 1\nv_add_f32_dpp v{dst}, v{dst}, v{dst} {m} row_mask:0xf bank_mask:0xf")


def build(opt):
    k = K(opt)
    NT = "nt" if opt.get("nt", 1) else ""
    k.stamp(0)
    if opt.get("diag_pad"):
        k("s_memrealtime s[70:71]")
    k("s_load_dwordx16 s[8:23], s[0:1], 0\ns_load_dwordx8 s[24:31], s[0:1], 64\ns_load_dwordx4 s[32:35], s[0:1], 96")
    k("s_cmp_ge_u32 s2, 256\ns_cbranch_scc1 L_end")
    k(f"v_lshrrev_b32 v1, 6, v0\nv_and_b32 v0, 63, v0\nv_readfirstlane_b32 s{S_W}, v1")
    k(f"s_and_b32 s{S_XCD}, s2, 7\ns_lshr_b32 s{S_SLOT}, s2, 3\ns_mov_b32 s{S_SPIN}, 0")
    k("v_lshrrev_b32 v2, 4, v0\nv_and_b32 v3, 15, v0\nv_lshlrev_b32 v4, 4, v0")
    if opt.get("codepf", 1):
        k("s_getpc_b64 s[36:37]\nL_pc:\ns_and_b32 s36, s36, 0xffffff00")
        k(f"s_lshl_b32 s6, s{S_SLOT}, 2\ns_add_u32 s6, s6, s{S_W}\ns_lshl_b32 s6, s6, 7\ns_min_u32 s6, s6, L_end-{NAME}_kernel-64")
        k("v_lshl_add_u32 v9, v0, 6, s6\ns_mov_b64 exec, 3\nglobal_load_dword v255, v9, s[36:37]\ns_mov_b64 exec, -1")
    k(f"s_and_b32 s66, s{S_SLOT}, 3\ns_lshl_b32 s6, s{S_XCD}, 2\ns_add_u32 s66, s66, s6")
    k(f"s_bfe_u32 s67, s{S_SLOT}, 0x20002")
    k(f"s_lshl_b32 s6, s67, 2\ns_add_u32 s6, s6, s{S_W}\ns_lshl_b32 s68, s6, 5")
    k("s_lshl_b32 s6, s68, 13\ns_lshl_b32 s7, s66, 8\ns_add_u32 s69, s6, s7")
    k("v_lshlrev_b32 v5, 16, v2\nv_lshl_add_u32 v5, v3, 4, v5\nv_add_u32 v5, s69, v5")
    k("v_bfe_u32 v6, v0, 2, 2\nv_lshlrev_b32 v6, 15, v6\nv_lshl_add_u32 v6, v2, 6, v6\nv_and_b32 v7, 3, v0\nv_lshl_add_u32 v6, v7, 4, v6\nv_add_u32 v6, s69, v6")
    k("s_movk_i32 s7, 0x2000")
    k(f"s_cmp_lt_u32 s{S_SLOT}, 16\ns_cbranch_scc1 A_entry")

    k("s_lshl_b32 s6, s68, 1\nv_lshl_add_u32 v8, v2, 4, s6")
    k(f"s_lshl_b32 s6, s66, 2\ns_add_u32 s6, s6, s{S_W}\ns_lshl_b32 s6, s6, 9\ns_add_u32 s6, s6, {WS_QP}\nv_lshl_add_u32 v9, v0, 6, s6")
    k("s_waitcnt lgkmcnt(0)")
    k.stamp(1)
    k(f"s_load_dword s{S_TAG32}, s[34:35], 0")
    k("global_load_dwordx4 v[120:123], v4, s[8:9]\nglobal_load_dwordx4 v[20:23], v8, s[8:9]")
    k.srd(36, 12, NBYTES["wq"])
    k("s_mov_b32 s6, 0")
    for s in range(8):
        k(f"buffer_load_dwordx4 v[{32+4*s}:{35+4*s}], v5, s[36:39], s6 offen {NT}")
        if s < 7:
            k("s_add_u32 s6, s6, s7")
    k("s_mov_b64 exec, 0xff\nglobal_load_dword v254, v9, s[34:35] sc1\ns_mov_b64 exec, -1")
    k.srd(40, 14, NBYTES["wuk"])
    uplan = opt.get("uplan", [2, 0, 2, 2, 2])
    assert sum(uplan) == 8
    ucnt = [0]
    def wuk_loads(c):
        for _ in range(c):
            n = ucnt[0]; ucnt[0] += 1
            v, T = n >> 2, n & 3
            k(f"s_mov_b32 s6, {(16*v+T)*8192}\nbuffer_load_dwordx4 v[{64+4*n}:{67+4*n}], v6, s[40:43], s6 offen {NT}")
    wuk_loads(uplan[0])
    k("s_branch P_main")

    k("A_entry:")
    k(f"s_lshr_b32 s6, s{S_SLOT}, 1\ns_lshl_b32 s66, s{S_XCD}, 3\ns_add_u32 s66, s66, s6")
    k(f"s_and_b32 s67, s{S_SLOT}, 1")
    k(f"s_lshl_b32 s6, s66, 2\ns_add_u32 s6, s6, s{S_W}\ns_lshl_b32 s68, s6, 15\ns_lshl_b32 s6, s67, 14\ns_add_u32 s68, s68, s6")
    k(f"s_mul_i32 s69, s{S_W}, {32*ROW}")
    k("s_waitcnt lgkmcnt(0)")
    k.stamp(1)
    k(f"s_load_dword s{S_TAG32}, s[34:35], 0")
    k.srd(36, 10, NBYTES["ckv"])
    ndummy = opt.get("a_dummy", 4)
    if ndummy:
        k.srd(40, 12, NBYTES["wq"])
        k(f"s_mov_b32 s6, {(8-ndummy)*8192}")
        for s in range(ndummy):
            k(f"buffer_load_dwordx4 v[{32+4*s}:{35+4*s}], v5, s[40:43], s6 offen {NT}")
            if s < ndummy - 1:
                k("s_add_u32 s6, s6, s7")
    nduk = opt.get("a_duk", 0)
    if nduk:
        k.srd(44, 14, NBYTES["wuk"])
        for n in range(8 - nduk, 8):
            k(f"s_mov_b32 s6, {(16*(n>>2)+(n&3))*8192}\nbuffer_load_dwordx4 v[{64+4*n}:{67+4*n}], v6, s[44:47], s6 offen {NT}")
    k(f"s_mov_b32 m0, s69\ns_movk_i32 s20, {ROW}\ns_movk_i32 s21, 0x400")
    def row_loop(n):
        l = k.lab("A_rows")
        k(f"s_mov_b32 s6, {n}\n{l}:")
        k(f"buffer_load_dwordx4 v4, s[36:39], s68 offen {NT} lds")
        k(f"s_add_u32 m0, m0, s20\ns_add_u32 s68, s68, s21\ns_sub_u32 s6, s6, 1\ns_cmp_lg_u32 s6, 0\ns_cbranch_scc1 {l}")
    afirst = opt.get("a_first", 7)
    row_loop(afirst)
    k.stamp(10)
    k("s_branch A_setup\nA_setup_ret:")
    k.stamp(11)
    row_loop(16 - afirst)
    k.stamp(12)
    k("s_sub_u32 s68, s68, 0x4000\ns_xor_b32 s68, s68, 0x4000")
    asec = opt.get("a_sec", 10)
    row_loop(asec)
    k.stamp(2)
    k("s_branch A_main")

    k(".p2align 6\nP_main:")
    k.stamp(10)
    k.delta_masks(12, 3, 9)
    k(f"s_lshl_b32 s6, s{S_W}, 9\nv_add_u32 v96, s6, v4")
    k(f"s_add_u32 s6, s6, {P_QB}")
    k("v_lshrrev_b32 v9, 5, v0\nv_and_b32 v10, 1, v2\nv_lshl_add_u32 v9, v10, 1, v9\nv_lshl_add_u32 v9, v3, 2, v9\nv_lshl_add_u32 v97, v9, 2, s6")
    k("v_lshlrev_b32 v9, 6, v2\nv_lshl_add_u32 v9, v7, 4, v9\nv_lshrrev_b32 v10, 2, v3\nv_mov_b32 v11, 0x100")
    k("v_cmp_eq_u32 vcc, 0, v10\ns_nop 1\nv_cndmask_b32 v98, v11, v9, vcc\nv_cmp_eq_u32 vcc, 1, v10\ns_nop 1\nv_cndmask_b32 v99, v11, v9, vcc")
    k("v_add_u32 v98, s6, v98\nv_add_u32 v99, s6, v99")
    k("v_mov_b32 v100, 0\nv_mov_b32 v101, 0\nv_mov_b32 v102, 0\nv_mov_b32 v103, 0\nv_add_u32 v9, s6, v11\nds_write_b128 v9, v[100:103]")
    k(f"s_lshl_b32 s6, s66, 11\ns_add_u32 s6, s6, {WS_QP}\nv_add_u32 v104, s6, v4")
    k("s_lshl_b32 s7, s67, 9\ns_add_u32 s6, s6, s7\nv_add_u32 v105, s6, v4")
    k(f"s_lshl_b32 s6, s66, 9\ns_add_u32 s6, s6, s68\ns_lshl_b32 s6, s6, 2\ns_add_u32 s6, s6, {WS_QA}")
    k("v_lshlrev_b32 v9, 4, v2\nv_lshl_add_u32 v9, v10, 6, v9\nv_add_u32 v106, s6, v9")
    k.srd(52, 34, WS_USED)
    k.stamp(11)
    k.walk(["WP0", "WP2", "WP4", "WP6"], "WP_ret")
    k.stamp(12)
    k("s_waitcnt lgkmcnt(0)")
    k.tags()
    k(f"s_mov_b32 s21, {WS_FAR}\ns_mov_b32 s20, 0\ns_mov_b32 s{S_FAR}, 0")
    k(f"s_waitcnt vmcnt({10+ucnt[0]})")
    k.stamp(13)
    wuk_loads(uplan[1])
    k.unpack8(24, 120)
    k.ln_stats(24, 124, 125, 9, 16)
    k.wp("WP0", "WP1")
    k(f"s_waitcnt vmcnt({9+ucnt[0]})")
    wuk_loads(uplan[2])
    k.unpack8(24, 20)
    for s in range(8):
        k.ln_apply(24 + s, 124, 125, True)
    wuk_loads(uplan[3])
    k.stamp(2)
    left = uplan[4]
    for s in range(8):
        A = 16 + 4 * (s & 1)
        for r in range(4):
            k(f"v_and_b32 v{A+r}, v{24+s}, v{12+r}")
        k(f"s_waitcnt vmcnt({8-s+ucnt[0]})\ns_nop 0")
        k(f"v_mfma_f32_16x16x32_bf16 v[108:111], v[{A}:{A+3}], v[{32+4*s}:{35+4*s}], " + ("0" if s == 0 else "v[108:111]"))
        if left:
            wuk_loads(1); left -= 1
    k("s_mov_b32 exec_hi, 0\ns_nop 7\nds_write_b128 v96, v[108:111]\ns_mov_b64 exec, -1")
    k("s_waitcnt lgkmcnt(0)\ns_barrier")
    k.stamp(3)
    k.wp("WP1", "WP_ret")
    k(f"s_cmp_lg_u32 s{S_W}, 0\ns_cbranch_scc1 P_nopub")
    k("s_mov_b32 exec_hi, 0")
    for w in range(4):
        k(f"ds_read_b128 v[{16+4*w}:{19+4*w}], v4 offset:{P_QR+512*w}")
    k(f"v_mov_b32 v9, s{S_TAG12}\ns_waitcnt lgkmcnt(2)")
    for q in range(4):
        k(f"v_add_f32 v{16+q}, v{16+q}, v{20+q}")
    k("s_waitcnt lgkmcnt(0)")
    for q in range(4):
        k(f"v_add_f32 v{24+q}, v{24+q}, v{28+q}")
    for q in range(4):
        k(f"v_add_f32 v{100+q}, v{16+q}, v{24+q}")
    k(f"v_bfi_b32 v100, s{S_M12}, v9, v100")
    k("buffer_store_dwordx4 v[100:103], v105, s[52:55], 0 offen\ns_mov_b64 exec, -1")
    k(f"s_waitcnt vmcnt({opt.get('polla_left', 1) + 1})\ns_branch P_polla")
    k("P_nopub:")
    k(f"s_waitcnt vmcnt({opt.get('polla_left', 1)})")
    k("P_polla:")
    k.stamp(14)
    k("P_polla2:")
    k(f"buffer_load_dwordx4 v[32:35], v104, s[52:55], s{S_FAR} offen sc1\nbuffer_load_dwordx4 v[36:39], v104, s[52:55], s{S_FAR} offen offset:1024 sc1")
    def qp_far(l):
        k(f"s_cmp_lg_u32 s{S_W}, 0\ns_cbranch_scc1 {l}\ns_mov_b32 exec_hi, 0\nbuffer_store_dwordx4 v[100:103], v105, s[52:55], s21 offen sc1\ns_mov_b64 exec, -1\n{l}:")
    k("s_cmp_lg_u32 s20, 8\ns_cbranch_scc1 P_nofar1")
    qp_far("P_nofar1")
    k.spin()
    k.far_select(20)
    k(f"s_waitcnt vmcnt(0)\nv_xor_b32 v9, s{S_TAG12}, v32\nv_bitop3_b32 v9, v9, v36, s{S_TAG12} bitop3:0xf6")
    k(f"v_and_b32 v9, s{S_M12}, v9\nv_cmp_ne_u32 vcc, 0, v9\ns_cbranch_vccnz P_polla2")
    k.stamp(4)
    k("v_and_b32 v32, 0xfffff000, v32\nv_and_b32 v36, 0xfffff000, v36")
    for q in range(4):
        k(f"v_add_f32 v{32+q}, v{32+q}, v{36+q}")
    k("s_nop 0\nv_permlane32_swap_b32 v32, v34\ns_nop 0\nv_permlane32_swap_b32 v33, v35")
    k("v_add_f32 v32, v32, v34\nv_add_f32 v33, v33, v35\nv_cvt_pk_bf16_f32 v32, v32, v33")
    k("ds_write_b32 v97, v32\nds_read_b128 v[16:19], v98\nds_read_b128 v[20:23], v99")
    k("s_waitcnt lgkmcnt(1)")
    for T in range(4):
        k(f"v_mfma_f32_16x16x32_bf16 v[{32+4*T}:{35+4*T}], v[{64+4*T}:{67+4*T}], v[16:19], 0")
    k("s_waitcnt lgkmcnt(0)")
    for T in range(4):
        k(f"v_mfma_f32_16x16x32_bf16 v[{32+4*T}:{35+4*T}], v[{80+4*T}:{83+4*T}], v[20:23], v[{32+4*T}:{35+4*T}]")
    k("s_nop 4")
    for u in range(1, 4):
        for T in range(4):
            D = 32 + 4 * T
            k(f"v_add_f32_dpp v{16+T}, v{D+u}, v{D if u == 1 else 16+T} quad_perm:[{u},{u},{u},{u}] row_mask:0xf bank_mask:0xf")
    for T in range(4):
        k(f"v_cvt_pk_bf16_f32 v{16+T}, s{S_TAGF}, v{16+T}")
    k("s_mov_b32 exec_lo, 0x00110011\ns_mov_b32 exec_hi, 0x00110011")
    k("buffer_store_dwordx4 v[16:19], v106, s[52:55], 0 offen sc1\ns_mov_b64 exec, -1")
    k.stamp(5)
    qp_far("P_nofar2")
    k.wp("WP2", "WP3")

    nhelp = opt.get("p_help", 0)
    if nhelp:
        k.srd(36, 10, NBYTES["ckv"])
        k(f"s_bfe_u32 s6, s{S_SLOT}, 0x30001\ns_lshl_b32 s7, s{S_XCD}, 3\ns_add_u32 s6, s6, s7\ns_lshl_b32 s6, s6, 2\ns_add_u32 s6, s6, s{S_W}\ns_lshl_b32 s6, s6, 15")
        k(f"s_and_b32 s7, s{S_SLOT}, 1\ns_lshl_b32 s7, s7, 14\ns_add_u32 s6, s6, s7\ns_add_u32 s6, s6, {15*1024}")
        for n in range(nhelp):
            k(f"buffer_load_dwordx4 v[{160+4*n}:{163+4*n}], v4, s[36:39], s6 offen {NT}\ns_sub_u32 s6, s6, 0x400")
    k.srd(36, 22, NBYTES["w1"])
    k(f"s_and_b32 s33, s{S_SLOT}, 15\ns_cmp_lt_u32 s33, 11\ns_cselect_b32 s38, s38, 0")
    k(f"s_lshl_b32 s32, s{S_XCD}, 2\ns_add_u32 s32, s32, s{S_W}")
    k(f"s_mul_i32 s6, s32, {16*2752}\ns_lshl_b32 s7, s33, 8\ns_add_u32 s6, s6, s7")
    k(f"v_mul_u32_u24 v9, {4*2752}, v2\nv_lshl_add_u32 v9, v3, 4, v9\nv_add_u32 v9, s6, v9\nv_add_u32 v10, {2*2752}, v9")
    k("s_lshl_b32 s6, s32, 5\nv_lshl_add_u32 v11, v2, 3, s6\nglobal_load_dwordx2 v[126:127], v11, s[8:9]")
    for n in range(4):
        k(f"buffer_load_dwordx4 v[{144+4*n}:{147+4*n}], v{9+(n>>1)}, s[36:39], 0 offen offset:{(n&1)*2752} {NT}")
    k.srd(44, 16, NBYTES["wuv"])
    k.srd(48, 18, NBYTES["wo"])
    k("v_and_b32 v9, 1, v2\nv_lshlrev_b32 v10, 3, v9\nv_xor_b32 v10, v10, v3\nv_lshlrev_b32 v10, 4, v10")
    k(f"s_lshl_b32 s6, s67, 7\ns_lshl_b32 s7, s{S_W}, 2\ns_add_u32 s6, s6, s7\ns_lshl_b32 s6, s6, 13\ns_lshl_b32 s7, s66, 8\ns_add_u32 s6, s6, s7")
    k("v_lshl_add_u32 v11, v9, 19, v10\nv_lshrrev_b32 v5, 1, v2\nv_lshl_add_u32 v11, v5, 13, v11\nv_add_u32 v11, s6, v11")
    k(f"s_mul_i32 s68, s{S_W}, {8*ROW}\ns_add_u32 s6, s68, {P_U}\ns_mov_b32 m0, s6")
    def u_dma(ts):
        for t in ts:
            k(f"s_mov_b32 s6, {(16*(t&3)+2*(t>>2))*8192}\nbuffer_load_dwordx4 v11, s[44:47], s6 offen {NT} lds\ns_add_u32 m0, m0, {ROW}")
    nu = opt.get("u_first", 3)
    u_dma(range(nu))
    k("s_cmp_ge_u32 s33, 11\ns_cbranch_scc1 P_nohid")
    k.unpack8(24, 120)
    for i in range(8):
        k.ln_apply(24 + i, 124, 125, False)
    k.wp("WP8", "WP_ret")
    k.ln_stats(24, 120, 121, 16, 17)
    k(f"s_waitcnt vmcnt({4+nu})")
    k("v_lshlrev_b32 v24, 16, v126\nv_and_b32 v25, 0xffff0000, v126\nv_lshlrev_b32 v26, 16, v127\nv_and_b32 v27, 0xffff0000, v127")
    for i in range(4):
        k.ln_apply(24 + i, 124, 125, False)
        k.ln_apply(24 + i, 120, 121, True)
    for n in range(4):
        A = 16 + 4 * (n & 1)
        for r in range(4):
            k(f"v_and_b32 v{A+r}, v{24+n}, v{12+r}")
        k(f"s_waitcnt vmcnt({3-n+nu})\ns_nop 0")
        k(f"v_mfma_f32_16x16x32_bf16 v[28:31], v[{A}:{A+3}], v[{144+4*n}:{147+4*n}], " + ("0" if n == 0 else "v[28:31]"))
    k(f"s_lshl_b32 s6, s33, 5\ns_add_u32 s6, s6, s32\ns_lshl_b32 s6, s6, 9\ns_add_u32 s6, s6, {WS_HP}\nv_lshlrev_b32 v16, 5, v3\nv_lshl_add_u32 v16, v2, 4, v16\nv_add_u32 v16, s6, v16\nv_mov_b32 v17, s{S_TAG12}\ns_nop 1")
    k(f"v_bfi_b32 v28, s{S_M12}, v17, v28\ns_mov_b32 exec_hi, 0\nbuffer_store_dwordx4 v[28:31], v16, s[52:55], 0 offen sc1\ns_mov_b64 exec, -1")
    k("P_nohid:")
    u_dma(range(nu, 8))
    k(f"s_lshl_b32 s6, s66, 17\ns_lshl_b32 s7, s{S_W}, 12\ns_add_u32 s6, s6, s7\ns_lshl_b32 s7, s67, 8\ns_add_u32 s6, s6, s7")
    k("v_lshl_add_u32 v11, v2, 10, v10\nv_add_u32 v11, s6, v11")
    k(f"s_add_u32 s6, s68, {P_O}\ns_mov_b32 m0, s6")
    for t in range(8):
        k(f"s_mov_b32 s6, {t*16384}\nbuffer_load_dwordx4 v11, s[48:51], s6 offen {NT} lds\ns_add_u32 m0, m0, {ROW}")
    k(f"s_lshl_b32 s6, s66, 12\ns_add_u32 s6, s6, {WS_CX}\nv_add_u32 v104, s6, v4")
    k(f"s_lshl_b32 s7, s{S_W}, 10\ns_add_u32 s7, s7, s6\nv_lshl_add_u32 v5, v0, 6, s7")
    k("s_mov_b64 exec, 0xffff\nbuffer_load_dword v254, v5, s[52:55], 0 offen sc1\ns_mov_b64 exec, -1")
    k.wp("WP3", "WP8")
    k(f"s_lshl_b32 s7, s67, 2\ns_add_u32 s7, s7, s{S_W}\ns_lshl_b32 s7, s7, 4\ns_add_u32 s6, s6, s7\nv_lshl_add_u32 v105, v3, 8, s6")
    k(f"s_lshl_b32 s6, s66, 4\ns_add_u32 s6, s6, {WS_ML}\nv_lshlrev_b32 v5, 9, v0\nv_add_u32 v5, s6, v5")
    k(f"s_lshl_b32 s6, s66, 10\ns_lshl_b32 s7, s67, 8\ns_add_u32 s6, s6, s7\ns_lshl_b32 s7, s{S_W}, 6\ns_add_u32 s6, s6, s7\ns_add_u32 s6, s6, {WS_CP}")
    k("v_lshrrev_b32 v6, 2, v0\nv_lshlrev_b32 v6, 15, v6\nv_lshrrev_b32 v8, 5, v0\nv_lshlrev_b32 v8, 1, v8\nv_xor_b32 v8, v8, v7\nv_lshl_add_u32 v6, v8, 4, v6\nv_add_u32 v6, s6, v6")
    k(f"s_lshl_b32 s69, s{S_W}, 12\ns_add_u32 s69, s69, {P_G}")
    k("v_bfe_u32 v10, v0, 2, 2\nv_lshl_add_u32 v8, v2, 3, v10\nv_lshlrev_b32 v8, 6, v8\nv_lshl_add_u32 v8, v7, 3, v8\nv_lshl_add_u32 v8, v9, 5, v8\nv_add_u32 v96, s69, v8\nv_xor_b32 v97, 32, v96")
    k(f"s_lshl_b32 s6, s{S_W}, 7\ns_add_u32 s6, s6, {P_W}\nv_lshl_add_u32 v12, v0, 1, s6\nv_lshl_add_u32 v13, v2, 4, s6")
    k(f"v_mul_u32_u24 v10, {ROW}, v10\nv_lshl_add_u32 v10, v2, 8, v10\nv_lshl_add_u32 v10, v7, 3, v10")
    k(f"v_lshlrev_b32 v9, 7, v9\ns_add_u32 s6, s68, {P_U}\nv_add3_u32 v98, v10, v9, s6\nv_xor_b32 v11, 0x80, v9\nv_add3_u32 v99, v10, v11, s6")
    k(f"s_lshl_b32 s6, s{S_W}, 6\nv_xor_b32 v9, s6, v9\nv_add_u32 v9, {P_O}, v9\nv_add_u32 v100, v10, v9")
    k(f"s_lshl_b32 s6, s66, 11\ns_lshl_b32 s7, s67, 9\ns_add_u32 s6, s6, s7\ns_lshl_b32 s7, s{S_W}, 7\ns_add_u32 s6, s6, s7\ns_add_u32 s6, s6, {WS_OP}")
    k("v_lshrrev_b32 v9, 5, v0\nv_lshlrev_b32 v9, 6, v9\nv_lshl_add_u32 v9, v3, 4, v9\nv_add_u32 v15, s6, v9")
    for q in range(4):
        k(f"s_bfe_u32 s6, s{S_TAG32}, {hex(0x10000 + 2*q)}\ns_bfe_u32 s7, s{S_TAG32}, {hex(0x10000 + 2*q + 1)}\ns_lshl_b32 s7, s7, 16\ns_or_b32 s6, s6, s7\nv_mov_b32 v{108+q}, s6")
    k(f"v_mov_b32 v14, s{S_TAG12}\ns_mov_b32 s20, 0\ns_mov_b32 s{S_FAR}, 0")
    k.wp("WP4", "WP5")
    k("s_waitcnt vmcnt(9)")
    for T in range(8):
        for hf in range(2):
            R = 32 + 4 * T + 2 * hf
            k(f"ds_read_b64_tr_b16 v[{R}:{R+1}], v{98+(T>>2)} offset:{hf*4*ROW + 32*(T&3)}")
    k("s_waitcnt vmcnt(0)\ns_barrier")
    for sg in range(4):
        for T in range(2):
            for hf in range(2):
                R = 64 + 8 * sg + 4 * T + 2 * hf
                k(f"ds_read_b64_tr_b16 v[{R}:{R+1}], v100 offset:{sg*8*ROW + hf*4*ROW + 32*T}")
    k.stamp(6)
    k("P_pollml:")
    k("buffer_load_dwordx4 v[16:19], v5, s[52:55], 0 offen sc1")
    k.spin()
    k(f"s_waitcnt vmcnt(0)\nv_cmp_ne_u32 vcc, s{S_TAG32}, v18\ns_cbranch_vccnz P_pollml")
    k.stamp(7)
    def cp_gather():
        k("s_mov_b32 m0, s69\ns_mov_b32 s6, 0")
        for n in range(4):
            k("buffer_load_dwordx4 v6, s[52:55], s6 offen sc1 lds")
            if n < 3:
                k("s_add_u32 m0, m0, 0x400\ns_add_u32 s6, s6, 0x80000")
    cp_gather()
    k.wp("WP5", "WP_ret")
    k("v_mov_b32 v20, v16")
    k.wave_reduce("v_max_f32", 20, 21)
    k("v_sub_f32 v16, v16, v20\nv_exp_f32 v16, v16\ns_nop 0\nv_cvt_pk_bf16_f32 v16, 0, v16\nds_write_b16_d16_hi v12, v16\nv_mul_f32 v17, v17, v16")
    k("ds_read_b128 v[24:27], v13\nds_read_b128 v[28:31], v13 offset:64")
    k.wave_reduce("v_add_f32", 17, 21)
    k("v_rcp_f32 v17, v17")
    k("P_gwait:\ns_waitcnt vmcnt(0)")
    k.stamp(8)
    for Tt in range(2):
        for s in range(2):
            for hf in range(2):
                R = 192 + 8 * Tt + 4 * s + 2 * hf
                k(f"ds_read_b64_tr_b16 v[{R}:{R+1}], v{96+Tt} offset:{2048*s+256*hf}")
    k("v_mov_b32 v21, 0")
    for i in range(4):
        R = 192 + 4 * i
        k(f"s_waitcnt lgkmcnt({6-2*i})")
        for q in range(4):
            k(f"v_or_b32 v{R+32+q}, s{S_LSB}, v{R+q}")
        k(f"v_bitop3_b32 v21, v21, v{R}, s{S_TB} bitop3:0xf6\nv_bitop3_b32 v21, v21, v{R+1}, s{S_TB} bitop3:0xf6")
        Tt, s = i >> 1, i & 1
        k(f"v_mfma_f32_16x16x32_bf16 v[{208+4*Tt}:{211+4*Tt}], v[{R+32}:{R+35}], v[{24+4*s}:{27+4*s}], " + ("0" if s == 0 else f"v[{208+4*Tt}:{211+4*Tt}]"))
    for i in range(4):
        R = 192 + 4 * i
        k(f"v_bitop3_b32 v21, v21, v{R+2}, s{S_TB} bitop3:0xf6\nv_bitop3_b32 v21, v21, v{R+3}, s{S_TB} bitop3:0xf6")
    k("v_cvt_pk_bf16_f32 v216, v208, v209\nv_cvt_pk_bf16_f32 v217, v210, v211\nv_cvt_pk_bf16_f32 v218, v212, v213\nv_cvt_pk_bf16_f32 v219, v214, v215")
    k(f"v_and_b32 v21, s{S_LSB}, v21\nv_cmp_ne_u32 vcc, 0, v21")
    for T in range(8):
        D = 128 + 4 * T
        k(f"v_mfma_f32_16x16x32_bf16 v[{D}:{D+3}], v[216:219], v[{32+4*T}:{35+4*T}], 0")
    k("s_cbranch_vccz P_gok")
    cp_gather()
    k.spin()
    k("s_branch P_gwait\nP_gok:")
    k.wp("WP6", "WP7")
    k("s_mov_b64 exec, 0xffff\ns_nop 0")
    for q in range(4):
        k(f"v_perm_b32 v{220+q}, v{128+8*q+4}, v{128+8*q}, s{S_SELHI}\nv_bfi_b32 v{220+q}, s{S_LSB}, v{108+q}, v{220+q}")
    k("buffer_store_dwordx4 v[220:223], v105, s[52:55], 0 offen")
    if not opt.get("late_far", 1):
        k("buffer_store_dwordx4 v[220:223], v105, s[52:55], s21 offen sc1")
    k("s_mov_b64 exec, -1")
    k.stamp(11)
    k("P_pollcx:")
    for sg in range(4):
        k(f"buffer_load_dwordx4 v[{160+4*sg}:{163+4*sg}], v104, s[52:55], s{S_FAR} offen offset:{1024*sg} sc1")
    if opt.get("late_far", 1):
        k("s_cmp_lg_u32 s20, 8\ns_cbranch_scc1 P_nofar\ns_mov_b64 exec, 0xffff\nbuffer_store_dwordx4 v[220:223], v105, s[52:55], s21 offen sc1\ns_mov_b64 exec, -1\ns_waitcnt vmcnt(0)\nP_nofar:")
    k.spin()
    k.far_select(20)
    k("v_mov_b32 v21, 0")
    for sg in range(4):
        R = 160 + 4 * sg
        k(f"s_waitcnt vmcnt({3-sg})")
        for q in range(4):
            k(f"v_or_b32 v{R+16+q}, s{S_LSB}, v{R+q}")
        k(f"v_bitop3_b32 v21, v21, v{R}, v108 bitop3:0xf6\nv_bitop3_b32 v21, v21, v{R+1}, v109 bitop3:0xf6")
        for T in range(2):
            D = 192 + 4 * T
            k(f"v_mfma_f32_16x16x32_bf16 v[{D}:{D+3}], v[{R+16}:{R+19}], v[{64+8*sg+4*T}:{67+8*sg+4*T}], " + ("0" if sg == 0 else f"v[{D}:{D+3}]"))
    for sg in range(4):
        R = 160 + 4 * sg
        k(f"v_bitop3_b32 v21, v21, v{R+2}, v110 bitop3:0xf6\nv_bitop3_b32 v21, v21, v{R+3}, v111 bitop3:0xf6")
    k(f"v_and_b32 v21, s{S_LSB}, v21\nv_cmp_ne_u32 vcc, 0, v21\ns_cbranch_vccnz P_pollcx")
    k.stamp(12)
    k.wp("WP7", "WP_ret")
    k("v_add_f32 v192, v192, v193\nv_add_f32 v196, v196, v197\nv_add_f32 v194, v194, v195\nv_add_f32 v198, v198, v199\nv_add_f32 v192, v192, v194\nv_add_f32 v196, v196, v198")
    k("s_nop 1\nv_permlane32_swap_b32 v192, v196\nv_add_f32 v192, v192, v196\nv_mov_b32 v193, v192\ns_nop 1\nv_permlane16_swap_b32 v193, v192")
    k("v_add_f32 v192, v192, v193\nv_mul_f32 v24, v192, v17\ns_nop 1")
    for r in range(1, 4):
        k(f"v_mov_b32_dpp v{24+r}, v24 row_shl:{4*r} row_mask:0xf bank_mask:0xf")
    k(f"v_bfi_b32 v24, s{S_M12}, v14, v24\ns_mov_b32 exec_lo, 15\ns_mov_b32 exec_hi, 15")
    k("buffer_store_dwordx4 v[24:27], v15, s[52:55], 0 offen sc1")
    if opt.get("late_far", 1):
        k("s_mov_b64 exec, 0xffff\nbuffer_store_dwordx4 v[220:223], v105, s[52:55], s21 offen sc1")
    k.stamp(9)
    k.dump_stamps()
    k("s_endpgm")

    k(".p2align 6\nA_setup:")
    k.srd(52, 34, WS_USED)
    k(f"v_mul_u32_u24 v5, {ROW}, v3\nv_lshl_add_u32 v5, v2, 4, v5\nv_add_u32 v6, {L_Q}, v5\nv_add_u32 v5, s69, v5")
    k(f"v_lshrrev_b32 v7, 2, v0\nv_mul_u32_u24 v7, {ROW}, v7\nv_and_b32 v8, 3, v0\nv_lshl_add_u32 v7, v8, 3, v7\ns_lshl_b32 s6, s{S_W}, 8\nv_add_u32 v7, s6, v7\nv_add_u32 v8, {64*ROW}, v7")
    k(f"s_lshl_b32 s6, s67, 15\ns_lshl_b32 s7, s{S_W}, 13\ns_add_u32 s6, s6, s7\ns_add_u32 s6, s6, {WS_QA}\nv_add_u32 v9, s6, v4\nv_add_u32 v10, 0x1000, v9")
    k(f"s_mul_i32 s6, s{S_W}, {4*ROW}\ns_add_u32 s6, s6, {L_Q}\nv_lshl_add_u32 v11, v0, 3, s6")
    k(f"s_lshl_b32 s6, s{S_W}, 10\ns_add_u32 s6, s6, {L_P}\nv_add_u32 v12, s6, v4\nv_add_u32 v13, {L_P}, v4")
    k(f"s_lshl_b32 s6, s{S_W}, 2\ns_add_u32 s6, s6, {L_M}\nv_lshl_add_u32 v14, v3, 4, s6\nv_lshlrev_b32 v15, 4, v3\nv_add_u32 v15, {L_M}, v15")
    k(f"s_lshl_b32 s6, s66, 9\ns_lshl_b32 s7, s67, 8\ns_add_u32 s6, s6, s7\ns_add_u32 s6, s6, {WS_ML}\nv_add_u32 v16, s6, v4")
    k(f"s_lshl_b32 s6, s66, 15\ns_lshl_b32 s7, s67, 14\ns_add_u32 s6, s6, s7\ns_lshl_b32 s7, s{S_W}, 8\ns_add_u32 s6, s6, s7\ns_add_u32 s6, s6, {WS_CP}")
    k("v_lshlrev_b32 v17, 12, v2\nv_lshl_add_u32 v17, v3, 4, v17\nv_add_u32 v17, s6, v17")
    k("v_mov_b32 v20, 0x3f803f80\nv_mov_b32 v21, v20\nv_mov_b32 v22, v20\nv_mov_b32 v23, v20")
    k(f"s_mul_i32 s33, s{S_XCD}, 11\ns_add_u32 s33, s33, s{S_SLOT}\ns_cmp_lt_u32 s{S_SLOT}, 11\ns_cselect_b32 s33, s33, 99")
    k.srd(48, 26, NBYTES["w2"])
    k.srd(40, 24, NBYTES["b1"])
    k("s_cmp_lt_u32 s33, 86\ns_cselect_b32 s50, s50, 0\ns_cselect_b32 s42, s42, 0")
    k("s_lshl_b32 s7, s33, 5\nv_and_b32 v168, 3, v0\nv_lshl_add_u32 v170, v168, 2, v2\nv_lshl_add_u32 v170, v170, 1, s7\nv_mov_b32 v164, 0")
    k(f"s_lshr_b32 s6, s33, 3\ns_lshl_b32 s6, s6, 14\ns_and_b32 s7, s33, 7\ns_lshl_b32 s7, s7, 6\ns_add_u32 s6, s6, s7\ns_add_u32 s6, s6, {WS_HP}")
    k("v_lshrrev_b32 v169, 2, v0\nv_lshlrev_b32 v169, 9, v169\nv_lshl_add_u32 v169, v168, 4, v169\nv_add_u32 v169, s6, v169")
    k(f"s_lshl_b32 s6, s33, 14\ns_lshl_b32 s7, s{S_W}, 8\ns_add_u32 s6, s6, s7\nv_lshlrev_b32 v171, 10, v2\nv_lshl_add_u32 v171, v3, 4, v171\nv_add_u32 v171, s6, v171")
    k("s_movk_i32 s44, 0x1000\ns_movk_i32 s45, 0x2000\ns_movk_i32 s46, 0x3000")
    k.delta_masks(172, 3, 168)
    k.walk(["WA0", "WA2", "WA4", "WA6"], "WA_ret")
    k("s_waitcnt lgkmcnt(0)")
    k.tags()
    k(f"v_mov_b32 v18, s{S_TB}")
    k("s_branch A_setup_ret")
    mlp_loads = ["buffer_load_short_d16_hi v164, v170, s[40:43], 0 offen"]
    mlp_loads += [f"buffer_load_dwordx4 v[{144+4*n}:{147+4*n}], v171, s[48:51], {'0' if n == 0 else 's%d' % (43+n)} offen {NT}" for n in range(4)]

    k("A_main:")
    def key_frags(tau):
        for s in range(16):
            R = 64 * tau + 4 * s
            k(f"ds_read_b128 a[{R}:{R+3}], v5 offset:{tau*16*ROW + 64*s}")
    def pv_frags(hf):
        L = []
        for T in range(8):
            for kap in range(4):
                R = 128 + 32 * kap + 4 * T + 2 * hf
                L.append(f"ds_read_b64_tr_b16 a[{R}:{R+1}], v{7+(kap>>1)} offset:{(kap&1)*32*ROW + hf*16*ROW + 32*T}")
        return L
    def qa_loads():
        for n in range(8):
            k(f"buffer_load_dwordx4 v[{32+4*n}:{35+4*n}], v{9+(n>>2)}, s[52:55], 0 offen offset:{(n&3)*1024} sc1")
    k(f"s_waitcnt vmcnt({asec})")
    k.stamp(13)
    if asec < 16:
        row_loop(16 - asec)
    qa_early = opt.get("qa_early", 0)
    if qa_early:
        qa_loads()
    k.wp("WA0", "WA1")
    key_frags(0)
    k("s_barrier")
    for x in pv_frags(0):
        k(x)
    if not qa_early:
        k(f"s_waitcnt vmcnt({opt.get('qa_left', 0)})")
        qa_loads()
    k("s_waitcnt vmcnt(8)")
    k.stamp(3)
    key_frags(1)
    k.wp("WA1", "WA_ret")
    k.stamp(14)
    k("A_pollb:\nv_mov_b32 v19, 0")
    for n in range(8):
        R = 32 + 4 * n
        k(f"s_waitcnt vmcnt({7-n})")
        k(f"v_perm_b32 v{64+2*n}, v{R+1}, v{R}, s{S_SELHI}\nv_perm_b32 v{65+2*n}, v{R+3}, v{R+2}, s{S_SELHI}")
        k(f"ds_write_b64 v11, v[{64+2*n}:{65+2*n}] offset:{(n>>1)*ROW + (n&1)*512}")
        k(f"v_bitop3_b32 v19, v19, v{R}, s{S_TAG16} bitop3:0xf6\nv_bitop3_b32 v19, v19, v{R+3}, s{S_TAG16} bitop3:0xf6")
    k("v_and_b32 v19, 0xffff, v19\nv_cmp_ne_u32 vcc, 0, v19\ns_cbranch_vccz A_gotq")
    qa_loads()
    k.spin()
    k("s_branch A_pollb\nA_gotq:")
    k("s_waitcnt lgkmcnt(0)\ns_barrier")
    k.stamp(4)
    k.wp("WA2", "WA3")
    for s in range(16):
        k(f"ds_read_b128 v[{64+4*s}:{67+4*s}], v6 offset:{64*s}")
    SC = hex(f2u(128 ** -0.5))
    LOG2E = hex(f2u(math.log2(math.e)))
    k(f"s_mov_b32 s21, {LOG2E}")
    def rnd(v):
        return [f"v_cvt_pk_bf16_f32 v{v}, 0, v{v}", f"v_mul_f32 v{v}, {SC}, v{v}", f"v_cvt_pk_bf16_f32 v{v}, 0, v{v}"]
    for s in range(16):
        k(f"s_waitcnt lgkmcnt({15-s})")
        k(f"v_mfma_f32_16x16x32_bf16 v[24:27], a[{4*s}:{4*s+3}], v[{64+4*s}:{67+4*s}], " + ("0" if s == 0 else "v[24:27]"))
        if opt.get("mlp_early", 1) and s >= 4 and s % 2 == 0 and mlp_loads:
            k(mlp_loads.pop(0))
    pvl = pv_frags(1)
    fill = sum([rnd(24 + r) for r in range(4)], []) + ["v_max3_f32 v32, v24, v25, v26", "v_max_f32 v32, v32, v27"]
    for s in range(16):
        k(f"v_mfma_f32_16x16x32_bf16 v[28:31], a[{64+4*s}:{64+4*s+3}], v[{64+4*s}:{67+4*s}], " + ("0" if s == 0 else "v[28:31]"))
        for _ in range(3 if s < 8 else 1):
            k(pvl.pop(0))
        if s == 7:
            k.wp("WA3", "WA_ret")
        if s >= 8:
            for _ in range(2):
                if fill:
                    k(fill.pop(0))
    assert not fill and not pvl
    k("s_nop 6")
    for r in range(4):
        for x in rnd(28 + r):
            k(x)
    k("v_max3_f32 v32, v32, v28, v29\nv_max3_f32 v32, v32, v30, v31")
    for sw in ("v_permlane16_swap_b32", "v_permlane32_swap_b32"):
        k(f"v_mov_b32 v33, v32\ns_nop 1\n{sw} v33, v32\nv_max_f32 v32, v32, v33")
    k("v_mul_f32 v32, s21, v32\nv_ceil_f32 v32, v32")
    k.wp("WA4", "WA5")
    for r in range(8):
        k(f"v_fma_f32 v{24+r}, v{24+r}, s21, -v32")
    k("ds_write_b32 v14, v32")
    for r in range(8):
        k(f"v_exp_f32 v{24+r}, v{24+r}")
    k("s_nop 0")
    for q in range(4):
        k(f"v_cvt_pk_bf16_f32 v{36+q}, v{24+2*q}, v{25+2*q}")
    k("ds_write_b128 v12, v[36:39]\ns_waitcnt lgkmcnt(0)\ns_barrier")
    k.stamp(5)
    k("ds_read_b128 v[28:31], v15")
    for kap in range(4):
        k(f"ds_read_b128 v[{40+4*kap}:{43+4*kap}], v13 offset:{1024*kap}")
    k("s_waitcnt lgkmcnt(4)\nv_max3_f32 v24, v28, v29, v30\nv_max_f32 v24, v24, v31")
    for kap in range(4):
        k(f"v_sub_f32 v{28+kap}, v24, v{28+kap}\nv_min_f32 v{28+kap}, 0x437f0000, v{28+kap}\nv_cvt_u32_f32 v{28+kap}, v{28+kap}\nv_mul_u32_u24 v{28+kap}, 0x00800080, v{28+kap}")
        k(f"s_waitcnt lgkmcnt({3-kap})")
        for q in range(4):
            k(f"v_pk_sub_u16 v{40+4*kap+q}, v{40+4*kap+q}, v{28+kap} clamp")
        k("s_nop 1")
        k(f"v_mfma_f32_16x16x32_bf16 v[32:35], v[20:23], v[{40+4*kap}:{43+4*kap}], " + ("0" if kap == 0 else "v[32:35]"))
        k(f"v_mfma_f32_16x16x32_bf16 v[64:67], v[{40+4*kap}:{43+4*kap}], a[{128+32*kap}:{131+32*kap}], " + ("0" if kap == 0 else "v[64:67]"))
    k.wp("WA5", "WA_ret")
    fill = []
    for T in range(1, 8):
        D = 64 + 4 * T
        for kap in range(4):
            k(f"v_mfma_f32_16x16x32_bf16 v[{D}:{D+3}], v[{40+4*kap}:{43+4*kap}], a[{128+32*kap+4*T}:{131+32*kap+4*T}], " + ("0" if kap == 0 else f"v[{D}:{D+3}]"))
            for _ in range(2):
                if fill:
                    k(fill.pop(0))
        if T == 2:
            k(f"s_cmp_lg_u32 s{S_W}, 0\ns_cbranch_scc1 A_noml")
            k(f"v_mov_b32 v25, v32\nv_mov_b32 v26, s{S_TAG32}\nv_mov_b32 v27, s{S_TAG32}\ns_mov_b64 exec, 0xffff")
            k("buffer_store_dwordx4 v[24:27], v16, s[52:55], 0 offen sc1\ns_mov_b64 exec, -1\nA_noml:")
        if T in (3, 5):
            q = (T - 3) // 2
            for r in range(4):
                fill += [f"v_perm_b32 v{96+4*r+q}, v{64+8*q+4+r}, v{64+8*q+r}, s{S_SELHI}", f"v_bfi_b32 v{96+4*r+q}, s{S_LSB}, v18, v{96+4*r+q}"]
    assert not fill
    for r in range(4):
        k(f"v_perm_b32 v{96+4*r+2}, v{64+16+4+r}, v{64+16+r}, s{S_SELHI}\nv_bfi_b32 v{96+4*r+2}, s{S_LSB}, v18, v{96+4*r+2}")
    for r in range(4):
        k(f"v_perm_b32 v{96+4*r+3}, v{64+24+4+r}, v{64+24+r}, s{S_SELHI}\nv_bfi_b32 v{96+4*r+3}, s{S_LSB}, v18, v{96+4*r+3}")
        k(f"buffer_store_dwordx4 v[{96+4*r}:{99+4*r}], v17, s[52:55], 0 offen offset:{1024*r} sc1")
    k.stamp(6)
    k.wp("WA6", "WA7")
    k("s_cmp_lt_u32 s33, 86\ns_cbranch_scc1 M_main")
    k(f"s_cmp_lt_u32 s{S_SLOT}, 12\ns_cbranch_scc1 A_done\ns_cmp_lg_u32 s{S_W}, 0\ns_cbranch_scc1 A_done")

    k(f"s_lshl_b32 s20, s{S_XCD}, 2\ns_add_u32 s20, s20, s{S_SLOT}\ns_sub_u32 s20, s20, 12\ns_lshl_b32 s6, s20, 5")
    k("v_and_b32 v5, 3, v0\nv_lshl_add_u32 v6, v2, 2, v5\nv_lshl_add_u32 v6, v6, 1, s6")
    k("v_lshl_add_u32 v14, v5, 4, v2\nv_lshlrev_b32 v14, 2, v14")
    k("v_mov_b32 v7, 0\nv_mov_b32 v8, 0\nglobal_load_short_d16_hi v7, v6, s[8:9]\nglobal_load_short_d16_hi v8, v6, s[28:29]")
    k("v_lshrrev_b32 v9, 2, v0\nv_min_u32 v10, 5, v9\nv_lshlrev_b32 v9, 11, v9\nv_lshlrev_b32 v10, 11, v10\nv_lshl_add_u32 v9, v5, 4, v9\nv_lshl_add_u32 v10, v5, 4, v10")
    k(f"s_lshl_b32 s6, s20, 6\ns_add_u32 s7, s6, {WS_OP}\nv_add_u32 v11, s7, v9\ns_add_u32 s7, s6, {WS_MP}\nv_add_u32 v9, s7, v9\nv_add_u32 v10, s7, v10")
    reduce_rows(k, 32, 6, (9, 32768), 6, 12, "R_pollm")
    k.stamp(7)
    k.wp("WA7", "WA8")
    k("ds_bpermute_b32 v12, v14, v12\ns_waitcnt lgkmcnt(0)")
    k("v_cvt_pk_bf16_f32 v12, 0, v12\nv_add_f32 v12, v12, v8\nv_cvt_pk_bf16_f32 v12, 0, v12")
    k(f"v_mul_f32 v13, {hex(f2u(-math.log2(math.e)))}, v12\nv_exp_f32 v13, v13\ns_nop 0\nv_add_f32 v13, 1.0, v13\nv_rcp_f32 v13, v13\ns_nop 0\nv_mul_f32 v12, v12, v13\nv_cvt_pk_bf16_f32 v12, 0, v12")
    reduce_rows(k, 32, 2, (11, 32768), 0, 13, "R_pollo")
    k.stamp(8)
    k("v_cvt_pk_bf16_f32 v13, 0, v13\nv_mul_f32 v13, v13, v12\nv_cvt_pk_bf16_f32 v13, 0, v13\nv_add_f32 v13, v13, v7\nv_cvt_pk_bf16_f32 v13, 0, v13")
    k("s_mov_b32 exec_lo, 0x000f000f\ns_mov_b32 exec_hi, 0x000f000f\nglobal_store_short_d16_hi v6, v13, s[30:31]")
    k("s_cmp_lg_u32 s20, 0\ns_cbranch_scc1 A_done")
    k(f"s_mov_b64 exec, 1\nv_mov_b32 v5, 0\nv_mov_b32 v7, s{S_TAG32}\nglobal_store_dword v5, v7, s[34:35]")
    k("A_done:")
    if opt.get("diag_pad"):
        if "diag_xcd" in opt:
            k(f"s_cmp_lg_u32 s{S_XCD}, {opt['diag_xcd']}\ns_cbranch_scc1 L_end")
        k(f"s_add_u32 s70, s70, {opt['diag_pad']*100}\nL_pad:\ns_memrealtime s[72:73]\ns_waitcnt lgkmcnt(0)\ns_sub_u32 s72, s72, s70\ns_cmp_lt_i32 s72, 0\ns_cbranch_scc1 L_pad")
    k.stamp(9)
    k.dump_stamps()
    k("s_endpgm")

    k("M_main:")
    k.wp("WA8", "WA_ret")
    for x in mlp_loads:
        k(x)
    reduce_rows(k, 32, 2, (169, 8192), 0, 48, "M_poll")
    C1 = -2.0 * math.sqrt(2.0 / math.pi) * math.log2(math.e)
    k(f"s_mov_b32 s6, {hex(f2u(C1*0.044715))}\nv_mov_b32 v52, {hex(f2u(C1))}")
    k("v_cvt_pk_bf16_f32 v48, 0, v48\nv_add_f32 v48, v48, v164\nv_cvt_pk_bf16_f32 v48, 0, v48")
    k("v_mul_f32 v53, v48, v48\nv_fma_f32 v53, v53, s6, v52\nv_mul_f32 v53, v53, v48\nv_exp_f32 v53, v53\ns_nop 0\nv_add_f32 v53, 1.0, v53\nv_rcp_f32 v53, v53\ns_nop 0")
    k("v_mul_f32 v48, v48, v53\nv_cvt_pk_bf16_f32 v48, v48, v48\ns_nop 1")
    for n in range(4):
        A = 32 + 4 * n
        for r in range(4):
            k(f"v_and_b32_dpp v{A+r}, v48, v{172+r} quad_perm:[{n},{n},{n},{n}] row_mask:0xf bank_mask:0xf")
    k("s_nop 1")
    for n in range(4):
        k(f"v_mfma_f32_16x16x32_bf16 v[56:59], v[{32+4*n}:{35+4*n}], v[{144+4*n}:{147+4*n}], " + ("0" if n == 0 else "v[56:59]"))
    k(f"s_lshl_b32 s6, s33, 11\ns_lshl_b32 s7, s{S_W}, 9\ns_add_u32 s6, s6, s7\ns_add_u32 s6, s6, {WS_MP}\nv_lshlrev_b32 v9, 5, v3\nv_lshl_add_u32 v9, v2, 4, v9\nv_add_u32 v9, s6, v9\nv_mov_b32 v10, s{S_TAG12}\ns_nop 1")
    k(f"v_bfi_b32 v56, s{S_M12}, v10, v56\ns_mov_b32 exec_hi, 0")
    k("buffer_store_dwordx4 v[56:59], v9, s[52:55], 0 offen sc1")
    k.stamp(9)
    k.dump_stamps()
    k("L_end:\ns_endpgm")
    return k.text()


HEADER = open("cdna_kernels/" + NAME + ".s.ref").read().split("; Override launch")[0]

def emit(path, opt):
    body = build(opt)
    open(path, "w").write(wrap(body, 256, 256, LDS_BYTES, 512, 256, 102, HEADER))

if __name__ == "__main__":
    opt = {}
    for a in sys.argv[2:]:
        kk, v = a.split("=")
        opt[kk] = [int(c) for c in v.split(",")] if "," in v else int(v)
    emit(sys.argv[1], opt)
```
